```python
import torch

def _softmax(x, axis=-1):
    return torch.softmax(x, dim=axis)
def _gelu(x):
    return torch.nn.functional.gelu(x, approximate="tanh")
def _silu(x):
    return torch.nn.functional.silu(x)
def _sigmoid(x):
    return torch.sigmoid(x)
def _layernorm(x, axis=-1, eps=1e-5):
    m = x.mean(dim=axis, keepdim=True)
    v = x.var(dim=axis, keepdim=True, unbiased=False)
    return (x - m) / torch.sqrt(v + eps)
def _scatter_add(tgt, idx, src, axis=0):
    return tgt.clone().index_add_(axis, idx, src)
def _segment_sum(src, seg, n):
    out = torch.zeros((n,) + src.shape[1:], dtype=src.dtype)
    return out.index_add_(0, seg, src)
def _pad(x, pw):
    flat = tuple(v for pair in reversed(pw) for v in pair)
    return torch.nn.functional.pad(x, flat)

kernel_name = 'standalone__normalfloat_lut_codebook_lookup__prompt'

def setup_inputs():

    _w = (lambda a: (lambda t: t.to(torch.bfloat16) if t.is_floating_point() else t)(torch.as_tensor(a)))
    B, S, D, F = 1, 2048, 576, 4608
    G = -1 if -1 > 0 else D
    D = (D // G) * G
    ng = D // G
    nf4 = torch.tensor([
        -1.0, -0.6961928009986877, -0.5250730514526367, -0.39491748809814453,
        -0.28444138169288635, -0.18477343022823334, -0.09105003625154495, 0.0,
        0.07958029955625534, 0.16093020141124725, 0.24611230194568634, 0.33791524171829224,
        0.44070982933044434, 0.5626170039176941, 0.7229568362236023, 1.0
    ], dtype=float)
    qw = torch.randint(0, 16, (D, F)).to(torch.int64)
    absmax = (torch.abs((lambda *s: torch.randn(*s, dtype=torch.bfloat16) * 0.05)(ng, F)) + 0.01).to(float)
    return {
        "x": _w((lambda *s: torch.randn(*s, dtype=torch.bfloat16) * 0.05)(B, S, D)),
        "qw": _w(qw),
        "codebook": _w(nf4),
        "absmax": _w(absmax),
    }

def reference(x, qw, codebook, absmax):
    B, S, D = x.shape
    ng, F = absmax.shape
    G = D // ng
    w_nf = codebook[qw]
    s = (lambda x, n, axis: torch.repeat_interleave(x, n, dim=axis))(absmax, G, axis=0)
    w = (lambda x, dt: x.to(dt))(w_nf * s, x.dtype)
    return torch.einsum("bsd,df->bsf", x, w)
```

```python
import sys
NAME = "standalone__normalfloat_lut_codebook_lookup__prompt"

class Opt:
    store_flags = "sc1"
    D = 5
    RING = 6
    prio_compute = 0
    prio_helper = 0
    dbg = False

LUT_OFF = 0
STG_OFF = 256
RING_OFF = 8448
SLOT = 18432
NSLOT = 8
LDS_BYTES = RING_OFF + NSLOT * SLOT
AHEAD = 6

class Gen:
    def __init__(self):
        self.lines = []
        self.lgkm = []
        self.nins = 0
    def raw(self, s):
        self.lines.append(s)
    def label(self, l):
        self.lines.append(l + ":")
    def ins(self, s):
        self.lines.append("    " + s)
        self.nins += 1
    def comment(self, s):
        self.lines.append("    ; " + s)
    def ds(self, s, dests=()):
        if len(self.lgkm) >= 15:
            self.wait_lgkm(14)
        self.ins(s)
        self.lgkm.append(set(dests))
    def wait_lgkm(self, n):
        if len(self.lgkm) > n:
            self.ins(f"s_waitcnt lgkmcnt({n})")
            self.lgkm = self.lgkm[len(self.lgkm) - n:] if n > 0 else []
    def need(self, regs):
        regs = set(regs)
        last = -1
        for i, d in enumerate(self.lgkm):
            if d & regs:
                last = i
        if last >= 0:
            self.wait_lgkm(len(self.lgkm) - 1 - last)
    def text(self):
        return "\n".join(self.lines) + "\n"

def R(base, n):
    return list(range(base, base + n))
def vr(base, n):
    return f"v[{base}:{base+n-1}]" if n > 1 else f"v{base}"

def build(opt):
    g = Gen()
    g.raw(f"; @launch grid=(252,1,1) block=(512,1,1) lds={LDS_BYTES}")
    g.raw('.amdgcn_target "amdgcn-amd-amdhsa--gfx950"')
    g.raw(".text")
    g.raw(f".globl {NAME}_kernel")
    g.raw(".p2align 8")
    g.raw(f".type {NAME}_kernel,@function")
    g.label(f"{NAME}_kernel")
    I = g.ins
    I("s_cmp_ge_u32 s2, 252")
    I("s_cbranch_scc1 L_exit")
    I("s_load_dwordx4 s[20:23], s[0:1], 0")
    I("s_load_dwordx4 s[24:27], s[0:1], 16")
    I("s_load_dwordx2 s[28:29], s[0:1], 32")
    I("v_lshrrev_b32 v1, 6, v0")
    I("v_and_b32 v0, 63, v0")
    I("s_and_b32 s30, s2, 7")
    I("s_lshr_b32 s31, s2, 3")
    I("v_readfirstlane_b32 s3, v1")
    I("s_lshl_b32 s32, s30, 5")
    I("s_sub_i32 s33, s30, 4")
    I("s_max_i32 s33, s33, 0")
    I("s_sub_u32 s32, s32, s33")
    I("s_add_u32 s32, s32, s31")
    I("s_mul_i32 s33, s32, 9363")
    I("s_lshr_b32 s33, s33, 16")
    I("s_mul_i32 s34, s33, 7")
    I("s_sub_u32 s34, s32, s34")
    I("s_mul_i32 s35, s34, 18")
    I("s_min_u32 s36, s34, 2")
    I("s_add_u32 s35, s35, s36")
    I("s_cmp_lt_u32 s34, 2")
    I("s_cselect_b32 s36, 19, 18")
    I("s_cmp_ge_u32 s3, 6")
    I("s_cbranch_scc1 L_storer")
    I("s_cmp_ge_u32 s3, 4")
    I("s_cbranch_scc0 L_compute")

    g.label("L_loader")
    if opt.prio_helper: I(f"s_setprio {opt.prio_helper}")
    I("s_sub_u32 s37, s3, 4")
    I("v_lshrrev_b32 v4, 5, v0")
    I("v_mul_u32_u24 v4, 18432, v4")
    I("v_and_b32 v5, 31, v0")
    I("v_lshl_add_u32 v2, v5, 4, v4")
    I("v_xor_b32 v5, 8, v5")
    I("v_lshl_add_u32 v3, v5, 4, v4")
    I("v_lshrrev_b32 v7, 3, v0")
    I("v_lshrrev_b32 v8, 1, v7")
    I("s_lshl_b32 s38, s37, 2")
    I("v_add_u32 v8, s38, v8")
    I("v_and_b32 v9, 7, v0")
    I("v_xor_b32 v8, v8, v9")
    I("v_mul_u32_u24 v7, 1152, v7")
    I("v_lshl_add_u32 v6, v8, 4, v7")
    I("s_waitcnt lgkmcnt(0)")
    I("s_lshl_b32 s39, s33, 9")
    I("s_add_u32 s8, s22, s39")
    I("s_addc_u32 s9, s23, 0")
    I("s_and_b32 s9, s9, 0xffff")
    I("s_sub_u32 s10, 10616832, s39")
    I("s_mov_b32 s11, 0x20000")
    I("s_mul_i32 s39, s35, 18432")
    I("s_add_u32 s4, s20, s39")
    I("s_addc_u32 s5, s21, 0")
    I("s_and_b32 s5, s5, 0xffff")
    I("s_mul_i32 s6, s36, 18432")
    I("s_mov_b32 s7, 0x20000")
    I("s_mul_i32 s40, s37, 294912")
    I("s_lshl_b32 s42, s37, 13")
    I(f"s_add_u32 s41, s42, {RING_OFF}")
    I(f"s_add_u32 s43, s42, {RING_OFF + NSLOT*SLOT}")
    def issueW():
        I("s_mov_b32 m0, s41")
        I("s_mov_b32 s44, s40")
        for u in range(8):
            v = "v2" if u < 4 else "v3"
            I(f"buffer_load_dwordx4 {v}, s[8:11], s44 offen lds")
            if u < 7:
                I("s_add_u32 m0, m0, 1024")
                I("s_add_u32 s44, s44, 36864")
        I("s_add_u32 s40, s40, 589824")
        I(f"s_add_u32 s41, s41, {SLOT}")
        I("s_cmp_eq_u32 s41, s43")
        I(f"s_cselect_b32 s45, {NSLOT*SLOT}, 0")
        I("s_sub_u32 s41, s41, s45")
    for it in range(AHEAD):
        issueW()
    I(f"s_mov_b32 s46, {18 - AHEAD}")
    g.label("L_ldA")
    I("s_waitcnt vmcnt(40)")
    I("s_barrier")
    issueW()
    I("s_sub_u32 s46, s46, 1")
    I("s_cmp_lg_u32 s46, 0")
    I("s_cbranch_scc1 L_ldA")
    I("s_lshl_b32 s42, s37, 10")
    I(f"s_add_u32 s41, s42, {RING_OFF + (18 % NSLOT)*SLOT}")
    I(f"s_add_u32 s43, s42, {RING_OFF + NSLOT*SLOT}")
    I("s_mul_i32 s40, s37, 9216")
    I("s_mov_b32 s46, s36")
    g.label("L_ldB")
    I("s_waitcnt vmcnt(40)")
    I("s_barrier")
    I("s_mov_b32 m0, s41")
    I("s_mov_b32 s44, s40")
    for c in range(9):
        I("buffer_load_dwordx4 v6, s[4:7], s44 offen lds")
        if c < 8:
            I("s_add_u32 m0, m0, 2048")
            I("s_add_u32 s44, s44, 128")
    I("s_add_u32 s40, s40, 18432")
    I(f"s_add_u32 s41, s41, {SLOT}")
    I("s_cmp_eq_u32 s41, s43")
    I(f"s_cselect_b32 s45, {NSLOT*SLOT}, 0")
    I("s_sub_u32 s41, s41, s45")
    I("s_sub_u32 s46, s46, 1")
    I("s_cmp_lg_u32 s46, 0")
    I("s_cbranch_scc1 L_ldB")
    for d in range(8):
        I(f"s_waitcnt vmcnt({max(0, min(40, 45 - 9*d))})")
        I("s_barrier")
    I("s_endpgm")

    g.label("L_storer")
    if opt.prio_helper: I(f"s_setprio {opt.prio_helper}")
    I("s_sub_u32 s37, s3, 6")
    I("s_waitcnt lgkmcnt(0)")
    I("s_mov_b32 s16, s24")
    I("s_and_b32 s17, s25, 0xffff")
    I("s_mov_b32 s18, 32")
    I("s_mov_b32 s19, 0x20000")
    I("v_lshlrev_b32 v2, 1, v0")
    I("buffer_load_ushort v3, v2, s[16:19], 0 offen")
    I("s_mul_i32 s39, s35, 147456")
    I("s_lshl_b32 s38, s33, 8")
    I("s_add_u32 s39, s39, s38")
    I("s_add_u32 s12, s28, s39")
    I("s_addc_u32 s13, s29, 0")
    I("s_and_b32 s13, s13, 0xffff")
    I("s_mul_i32 s14, s36, 147456")
    I("s_sub_u32 s14, s14, s38")
    I("s_mov_b32 s15, 0x20000")
    I("v_lshrrev_b32 v4, 4, v0")
    I("s_lshl_b32 s38, s37, 3")
    I("v_add_u32 v4, s38, v4")
    I("v_and_b32 v5, 15, v0")
    for u in range(2):
        I(f"v_add_u32 v8, {4*u}, v4")
        I("v_xor_b32 v9, v5, v8")
        I("v_lshlrev_b32 v9, 4, v9")
        I(f"v_lshl_add_u32 v{10+u}, v8, 8, v9")
        I("v_mul_u32_u24 v8, 9216, v8")
        I(f"v_lshl_add_u32 v{12+u}, v5, 4, v8")
    I("s_waitcnt vmcnt(0)")
    I("v_lshlrev_b32 v3, 16, v3")
    I("v_lshlrev_b32 v2, 2, v0")
    I("v_cmp_gt_u32 vcc, 16, v0")
    I("s_and_saveexec_b64 s[40:41], vcc")
    I(f"ds_write_b32 v2, v3 offset:{LUT_OFF}")
    I("s_mov_b64 exec, s[40:41]")
    I("s_waitcnt lgkmcnt(0)")
    I("s_mov_b32 s46, 20")
    g.label("L_stA")
    I("s_barrier")
    I("s_sub_u32 s46, s46, 1")
    I("s_cmp_lg_u32 s46, 0")
    I("s_cbranch_scc1 L_stA")
    I("s_mov_b32 s46, s36")
    I("s_mov_b32 s44, 0")
    I("s_mov_b32 s45, 0")
    g.label("L_stB")
    I("s_barrier")
    I("v_add_u32 v14, s45, v10")
    I("v_add_u32 v15, s45, v11")
    I(f"ds_read_b128 v[16:19], v14 offset:{STG_OFF}")
    I(f"ds_read_b128 v[20:23], v15 offset:{STG_OFF}")
    I("s_xor_b32 s45, s45, 4096")
    I("s_waitcnt lgkmcnt(1)")
    I(f"buffer_store_dwordx4 v[16:19], v12, s[12:15], s44 offen {opt.store_flags}")
    I("s_waitcnt lgkmcnt(0)")
    I(f"buffer_store_dwordx4 v[20:23], v13, s[12:15], s44 offen {opt.store_flags}")
    I("s_add_u32 s44, s44, 147456")
    I("s_sub_u32 s46, s46, 1")
    I("s_cmp_lg_u32 s46, 0")
    I("s_cbranch_scc1 L_stB")
    I("s_endpgm")

    g.label("L_compute")
    if opt.prio_compute: I(f"s_setprio {opt.prio_compute}")
    WB = 112
    ACC = 96
    XR = 64
    EP = 60
    RAW = 16
    LUTV = 64
    V_S0, V_S1 = 2, 3
    V_RA0, V_RA = 4, 5
    V_XA0, V_XA1 = 6, 7
    V_XC0, V_XC1 = 8, 9
    V_ST = 10
    I("s_waitcnt lgkmcnt(0)")
    I("s_mov_b32 s16, s26")
    I("s_and_b32 s17, s27, 0xffff")
    I("s_mov_b32 s18, 9216")
    I("s_mov_b32 s19, 0x20000")
    I("v_and_b32 v11, 15, v0")
    I("v_lshrrev_b32 v12, 4, v0")
    I("s_lshl_b32 s38, s33, 8")
    I("s_lshl_b32 s39, s3, 6")
    I("s_add_u32 s38, s38, s39")
    I("v_lshlrev_b32 v13, 2, v11")
    I("buffer_load_dword v14, v13, s[16:19], s38 offen")
    I("s_lshl_b32 s39, s3, 7")
    I("v_lshl_add_u32 v15, v11, 3, s39")
    I("v_and_b32 v13, 1, v12")
    I("v_lshlrev_b32 v13, 7, v13")
    I("v_xor_b32 v15, v15, v13")
    I(f"v_lshl_add_u32 v{V_RA0}, v12, 12, v15")
    I(f"v_add_u32 v{V_RA0}, {RING_OFF}, v{V_RA0}")
    I("v_lshrrev_b32 v13, 1, v11")
    I("v_xor_b32 v13, v13, v12")
    I("v_lshlrev_b32 v13, 4, v13")
    I("v_and_b32 v15, 7, v11")
    I("v_lshl_add_u32 v13, v15, 7, v13")
    I("v_lshrrev_b32 v15, 3, v11")
    I("v_lshl_add_u32 v13, v15, 10, v13")
    I(f"v_add_u32 v{V_XA0}, {RING_OFF}, v13")
    I(f"v_xor_b32 v{V_XA1}, 64, v{V_XA0}")
    I("s_lshl_b32 s39, s3, 2")
    I("v_add_u32 v13, s39, v12")
    I("v_xor_b32 v13, v13, v11")
    I("v_lshlrev_b32 v13, 4, v13")
    I(f"v_lshl_add_u32 v{V_ST}, v11, 8, v13")
    I("s_waitcnt vmcnt(0)")
    I(f"v_lshlrev_b32 v{V_S0}, 16, v14")
    I(f"v_and_b32 v{V_S1}, 0xffff0000, v14")

    def raw_reads(i):
        rb = RAW + (i % 2) * 16
        I(f"v_add_u32 v{V_RA}, {(i % NSLOT) * SLOT}, v{V_RA0}")
        for e in range(8):
            g.ds(f"ds_read_b64 {vr(rb + 2*e, 2)}, v{V_RA} offset:{e*512}", R(rb + 2*e, 2))
    def shifts_lut(i, es):
        rb = RAW + (i % 2) * 16
        for e in es:
            g.need(R(rb + 2*e, 2))
            for c in range(2):
                I(f"v_lshlrev_b32 v{rb+2*e+c}, 2, v{rb+2*e+c}")
            for c in range(2):
                g.ds(f"ds_read_b32 v{LUTV+2*e+c}, v{rb+2*e+c} offset:{LUT_OFF}", [LUTV + 2*e + c])
    def mul_cvt(i, ts):
        for t in ts:
            g.need(R(LUTV + 4*t, 4))
            for e in (2*t, 2*t+1):
                I(f"v_mul_f32 v{LUTV+2*e}, v{LUTV+2*e}, v{V_S0}")
                I(f"v_mul_f32 v{LUTV+2*e+1}, v{LUTV+2*e+1}, v{V_S1}")
            for c in range(2):
                I(f"v_cvt_pk_bf16_f32 v{WB + (i*2+c)*4 + t}, v{LUTV+4*t+c}, v{LUTV+4*t+2+c}")
    I("s_barrier")
    raw_reads(0)
    for i in range(1, 19):
        shifts_lut(i-1, range(0, 8))
        mul_cvt(i-1, range(0, 2))
        I("s_barrier")
        if i < 18:
            raw_reads(i)
        else:
            I(f"v_add_u32 v{V_XC0}, {(18 % NSLOT) * SLOT}, v{V_XA0}")
            I(f"v_add_u32 v{V_XC1}, {(18 % NSLOT) * SLOT}, v{V_XA1}")
        mul_cvt(i-1, range(2, 4))
    def xread(s):
        slot = s % opt.RING
        a = V_XC0 if (s & 1) == 0 else V_XC1
        g.ds(f"ds_read_b128 {vr(XR + slot*4, 4)}, v{a} offset:{(s >> 1) * 2048}", R(XR + slot*4, 4))
    for s in range(opt.D):
        xread(s)
    I(f"s_mov_b32 s47, {(18 % NSLOT) * SLOT}")
    I("s_lshr_b32 s46, s36, 1")
    saved = list(g.lgkm)
    def epilogue(par):
        a0 = ACC + par*8; a1 = a0 + 4
        for r in range(4):
            I(f"v_cvt_pk_bf16_f32 v{EP+r}, v{a0+r}, v{a1+r}")
        g.ds(f"ds_write_b128 v{V_ST}, {vr(EP,4)} offset:{STG_OFF + par*4096}", [])
    def item(par):
        for s in range(18):
            slot = s % opt.RING
            xr = XR + slot*4
            g.need(R(xr, 4))
            for c in range(2):
                acc = ACC + par*8 + c*4
                src = "0" if s == 0 else vr(acc, 4)
                I(f"v_mfma_f32_16x16x32_bf16 {vr(acc,4)}, {vr(WB + (s*2+c)*4, 4)}, {vr(xr,4)}, {src}")
            if s == 18 - opt.D:
                g.wait_lgkm_epi()
                I("s_barrier")
                I(f"s_add_u32 s47, s47, {SLOT}")
                I(f"s_cmp_eq_u32 s47, {NSLOT*SLOT}")
                I("s_cselect_b32 s47, 0, s47")
                I(f"v_add_u32 v{V_XC0}, s47, v{V_XA0}")
                I(f"v_add_u32 v{V_XC1}, s47, v{V_XA1}")
            ns = s + opt.D
            xread(ns % 18)
            if s == 4:
                epilogue(1 - par)
                g.epi_mark = len(g.lgkm) - 1
                g.epi_pending = True
    def wait_lgkm_epi():
        idx = -1
        for k, d in enumerate(g.lgkm):
            if len(d) == 0: idx = k
        if idx >= 0:
            g.wait_lgkm(len(g.lgkm) - 1 - idx)
    g.wait_lgkm_epi = wait_lgkm_epi
    g.label("L_loop")
    item(0)
    item(1)
    assert [sorted(x) for x in g.lgkm] == [sorted(x) for x in saved], (g.lgkm, saved)
    I("s_sub_u32 s46, s46, 1")
    I("s_cmp_lg_u32 s46, 0")
    I("s_cbranch_scc1 L_loop")
    I("s_cmp_eq_u32 s36, 19")
    I("s_cbranch_scc0 L_tail1")
    st = list(g.lgkm)
    item(0)
    I("s_nop 7")
    I("s_nop 1")
    epilogue(0)
    I("s_waitcnt lgkmcnt(0)")
    I("s_barrier")
    I("s_endpgm")
    g.label("L_tail1")
    g.lgkm = st
    I("s_nop 7")
    I("s_nop 1")
    epilogue(1)
    I("s_waitcnt lgkmcnt(0)")
    I("s_barrier")
    g.label("L_exit")
    I("s_endpgm")
    g.raw('.section .rodata,"a"')
    g.raw(".p2align 6")
    g.raw(f".amdhsa_kernel {NAME}_kernel")
    g.raw("  .amdhsa_next_free_vgpr 256")
    g.raw("  .amdhsa_next_free_sgpr 64")
    g.raw("  .amdhsa_accum_offset 256")
    g.raw("  .amdhsa_group_segment_fixed_size 0")
    g.raw("  .amdhsa_kernarg_size 56")
    g.raw("  .amdhsa_user_sgpr_count 2")
    g.raw("  .amdhsa_user_sgpr_kernarg_segment_ptr 1")
    g.raw("  .amdhsa_system_sgpr_workgroup_id_x 1")
    g.raw("  .amdhsa_float_denorm_mode_32 3")
    g.raw(".end_amdhsa_kernel")
    return g.text()

if __name__ == "__main__":
    opt = Opt()
    for a in sys.argv[2:]:
        k, v = a.split("=")
        cur = getattr(opt, k)
        setattr(opt, k, type(cur)(v) if not isinstance(cur, bool) else v == "1")
    open(sys.argv[1], "w").write(build(opt))
```

```python
import sys
NAME = "standalone__normalfloat_lut_codebook_lookup__prompt"

class Opt:
    store_flags = "sc1"
    D = 6
    RING = 6
    A0 = 4
    AHEAD = 6
    prio_compute = 0
    prio_helper = 0
    addr = "pk"
    comb = "perm"
    rot = True
    wait2 = True
    dbg = False
    dbgwg = 0
    epi0 = 2
    xflags = ""
    wflags = ""

STG_OFF = 0
RING_OFF = 8192
SLOT = 18432
NSLOT = 8
LDS_BYTES = RING_OFF + NSLOT * SLOT
NW = 18
NX = 19

class Gen:
    def __init__(self):
        self.lines = []
        self.lgkm = []
        self.dbg = False
    def raw(self, s): self.lines.append(s)
    def label(self, l): self.lines.append(l + ":")
    def ins(self, s): self.lines.append("    " + s)
    def ds(self, s, dests=()):
        if len(self.lgkm) >= 15:
            self.wait_lgkm(11)
        self.ins(s)
        self.lgkm.append(set(dests))
    def wait_lgkm(self, n):
        if len(self.lgkm) > n:
            self.ins(f"s_waitcnt lgkmcnt({n})")
            self.lgkm = self.lgkm[len(self.lgkm) - n:] if n > 0 else []
    def need(self, regs):
        regs = set(regs)
        last = -1
        for i, d in enumerate(self.lgkm):
            if d & regs: last = i
        if last >= 0: self.wait_lgkm(len(self.lgkm) - 1 - last)
    def stamp(self, k, real=False):
        if self.dbg:
            self.ins(f"s_{'memrealtime' if real else 'memtime'} s[{64+2*k}:{65+2*k}]")
    def dump(self, role, wavecond, dbgwg):
        if not self.dbg: return
        lab = f"L_nodump{role}_{len(self.lines)}"
        self.ins("s_waitcnt lgkmcnt(0) vmcnt(0)")
        self.ins(f"s_cmp_eq_u32 s2, {dbgwg}")
        self.ins(f"s_cbranch_scc0 {lab}")
        self.ins(f"s_cmp_eq_u32 s3, {wavecond}")
        self.ins(f"s_cbranch_scc0 {lab}")
        self.ins("s_load_dwordx2 s[60:61], s[0:1], 40")
        self.ins("s_waitcnt lgkmcnt(0)")
        self.ins("s_and_b32 s61, s61, 0xffff")
        self.ins("s_mov_b32 s62, 256")
        self.ins("s_mov_b32 s63, 0x20000")
        self.ins("v_mov_b32 v20, 0")
        for k in range(16):
            self.ins(f"v_writelane_b32 v20, s{64+2*k}, {k}")
        self.ins("v_mbcnt_lo_u32_b32 v21, -1, 0")
        self.ins("v_mbcnt_hi_u32_b32 v21, -1, v21")
        self.ins("v_cmp_gt_u32 vcc, 16, v21")
        self.ins(f"v_lshlrev_b32 v21, 2, v21")
        self.ins(f"v_add_u32 v21, {role*64}, v21")
        self.ins("s_and_saveexec_b64 s[58:59], vcc")
        self.ins("buffer_store_dword v20, v21, s[60:63], 0 offen")
        self.ins("s_waitcnt vmcnt(0)")
        self.label(lab)
    def text(self): return "\n".join(self.lines) + "\n"

def R(base, n): return list(range(base, base + n))
def vr(base, n): return f"v[{base}:{base+n-1}]" if n > 1 else f"v{base}"

def issue_schedule(opt):
    total = NW + NX
    sched = {-1: list(range(opt.A0))}
    nxt = opt.A0
    for i in range(0, total + 2):
        lst = []
        n = 1 if i < NW - 1 else 2
        while n > 0 and nxt < total and nxt <= i + opt.AHEAD:
            lst.append(nxt); nxt += 1; n -= 1
        sched[i] = lst
    assert nxt == total
    return sched

def build(opt):
    g = Gen(); g.dbg = opt.dbg
    I = g.ins
    g.raw(f"; @launch grid=(252,1,1) block=(512,1,1) lds={LDS_BYTES}")
    g.raw('.amdgcn_target "amdgcn-amd-amdhsa--gfx950"')
    g.raw(".text")
    g.raw(f".globl {NAME}_kernel")
    g.raw(".p2align 8")
    g.raw(f".type {NAME}_kernel,@function")
    g.label(f"{NAME}_kernel")
    I("s_cmp_ge_u32 s2, 252")
    I("s_cbranch_scc1 L_exit")
    g.stamp(0); g.stamp(15, True)
    I("s_load_dwordx4 s[20:23], s[0:1], 0")
    I("s_load_dwordx4 s[24:27], s[0:1], 16")
    I("s_load_dwordx2 s[28:29], s[0:1], 32")
    I("v_lshrrev_b32 v1, 6, v0")
    I("v_and_b32 v0, 63, v0")
    I("s_and_b32 s30, s2, 7")
    I("s_lshr_b32 s31, s2, 3")
    I("v_readfirstlane_b32 s3, v1")
    I("s_lshl_b32 s32, s30, 5")
    I("s_sub_i32 s33, s30, 4")
    I("s_max_i32 s33, s33, 0")
    I("s_sub_u32 s32, s32, s33")
    I("s_add_u32 s32, s32, s31")
    I("s_mul_i32 s33, s32, 9363")
    I("s_lshr_b32 s33, s33, 16")
    I("s_mul_i32 s34, s33, 7")
    I("s_sub_u32 s34, s32, s34")
    I("s_mul_i32 s35, s34, 18")
    I("s_min_u32 s36, s34, 2")
    I("s_add_u32 s35, s35, s36")
    I("s_cmp_lt_u32 s34, 2")
    I("s_cselect_b32 s36, 19, 18")
    I("s_cmp_ge_u32 s3, 6")
    I("s_cbranch_scc1 L_storer")
    I("s_cmp_ge_u32 s3, 4")
    I("s_cbranch_scc0 L_compute")

    g.label("L_loader")
    if opt.prio_helper: I(f"s_setprio {opt.prio_helper}")
    I("s_sub_u32 s37, s3, 4")
    I("v_lshrrev_b32 v4, 5, v0")
    I("v_mul_u32_u24 v4, 18432, v4")
    I("v_and_b32 v5, 31, v0")
    I("v_lshl_add_u32 v2, v5, 4, v4")
    I("v_xor_b32 v5, 8, v5")
    I("v_lshl_add_u32 v3, v5, 4, v4")
    I("v_lshrrev_b32 v7, 3, v0")
    I("v_lshrrev_b32 v8, 1, v7")
    I("s_lshl_b32 s38, s37, 2")
    I("v_add_u32 v8, s38, v8")
    I("v_and_b32 v9, 7, v0")
    I("v_xor_b32 v8, v8, v9")
    I("v_mul_u32_u24 v7, 1152, v7")
    I("v_lshl_add_u32 v6, v8, 4, v7")
    if opt.rot:
        I("s_mul_i32 s47, s34, 9")
        I("s_add_u32 s47, s47, 3")
        I("s_mul_i32 s47, s47, 9363")
        I("s_lshr_b32 s47, s47, 16")
    else:
        I("s_mov_b32 s47, 0")
    I("s_mul_i32 s40, s47, 1179648")
    I("s_mul_i32 s42, s37, 294912")
    I("s_add_u32 s40, s40, s42")
    I("s_add_u32 s43, s42, 10616832")
    I("s_mul_i32 s42, s37, 9216")
    for c in range(9):
        I(f"s_add_u32 s44, s47, {c}")
        I("s_cmp_ge_u32 s44, 9")
        I("s_cselect_b32 s45, 9, 0")
        I("s_sub_u32 s44, s44, s45")
        I("s_lshl_b32 s44, s44, 7")
        I(f"s_add_u32 s{48+c}, s44, s42")
    I("s_lshl_b32 s38, s37, 13")
    I("s_lshl_b32 s39, s37, 10")
    I("s_waitcnt lgkmcnt(0)")
    I("s_lshl_b32 s41, s33, 9")
    I("s_add_u32 s8, s22, s41")
    I("s_addc_u32 s9, s23, 0")
    I("s_and_b32 s9, s9, 0xffff")
    I("s_sub_u32 s10, 10616832, s41")
    I("s_mov_b32 s11, 0x20000")
    I("s_mul_i32 s41, s35, 18432")
    I("s_add_u32 s4, s20, s41")
    I("s_addc_u32 s5, s21, 0")
    I("s_and_b32 s5, s5, 0xffff")
    I("s_mul_i32 s6, s36, 18432")
    I("s_mov_b32 s7, 0x20000")
    issued = []
    def issue(it):
        slot = RING_OFF + (it % NSLOT) * SLOT
        if it < NW:
            I(f"s_add_u32 m0, s38, {slot}")
            I("s_mov_b32 s44, s40")
            for u in range(8):
                v = "v2" if u < 4 else "v3"
                I(f"buffer_load_dwordx4 {v}, s[8:11], s44 offen lds {opt.wflags}".rstrip())
                issued.append(it)
                if u < 7:
                    I("s_add_u32 m0, m0, 1024")
                    I("s_add_u32 s44, s44, 36864")
            I("s_add_u32 s40, s40, 589824")
            I("s_cmp_ge_u32 s40, s43")
            I("s_cselect_b32 s45, 10616832, 0")
            I("s_sub_u32 s40, s40, s45")
        else:
            t = it - NW
            I(f"s_add_u32 m0, s39, {slot}")
            for c in range(9):
                I(f"s_add_u32 s44, s{48+c}, {t*18432}")
                I(f"buffer_load_dwordx4 v6, s[4:7], s44 offen lds {opt.xflags}".rstrip())
                issued.append(it)
                if c < 8:
                    I("s_add_u32 m0, m0, 2048")
    def wait_item(it):
        n = sum(1 for x in issued if x > it)
        assert n <= 63
        I(f"s_waitcnt vmcnt({n})")
    sched = issue_schedule(opt)
    for it in sched[-1]: issue(it)
    g.stamp(1)
    for i in range(0, 37):
        wait_item(i)
        if i == 0: g.stamp(2)
        I("s_barrier")
        if i in (6, 12, 18, 24): g.stamp({6:3, 12:4, 18:5, 24:6}[i])
        for it in sched.get(i, []): issue(it)
    g.stamp(7)
    I("s_barrier")
    I("s_cmp_eq_u32 s36, 19")
    I("s_cbranch_scc0 L_ld_end")
    I("s_barrier")
    g.label("L_ld_end")
    g.stamp(8); g.stamp(14, True)
    g.dump(1, 4, opt.dbgwg)
    I("s_endpgm")

    g.label("L_storer")
    if opt.prio_helper: I(f"s_setprio {opt.prio_helper}")
    I("s_sub_u32 s37, s3, 6")
    I("v_lshrrev_b32 v4, 4, v0")
    I("s_lshl_b32 s38, s37, 3")
    I("v_add_u32 v4, s38, v4")
    I("v_and_b32 v5, 15, v0")
    for u in range(2):
        I(f"v_add_u32 v8, {4*u}, v4")
        I("v_xor_b32 v9, v5, v8")
        I("v_lshlrev_b32 v9, 4, v9")
        I(f"v_lshl_add_u32 v{10+u}, v8, 8, v9")
        I("v_mul_u32_u24 v8, 9216, v8")
        I(f"v_lshl_add_u32 v{12+u}, v5, 4, v8")
    I("s_waitcnt lgkmcnt(0)")
    I("s_mul_i32 s39, s35, 147456")
    I("s_lshl_b32 s38, s33, 8")
    I("s_add_u32 s39, s39, s38")
    I("s_add_u32 s12, s28, s39")
    I("s_addc_u32 s13, s29, 0")
    I("s_and_b32 s13, s13, 0xffff")
    I("s_mul_i32 s14, s36, 147456")
    I("s_sub_u32 s14, s14, s38")
    I("s_mov_b32 s15, 0x20000")
    I("s_mov_b32 s46, 20")
    g.stamp(1)
    g.label("L_stA")
    I("s_barrier")
    I("s_sub_u32 s46, s46, 1")
    I("s_cmp_lg_u32 s46, 0")
    I("s_cbranch_scc1 L_stA")
    g.stamp(2)
    I("s_mov_b32 s46, s36")
    I("s_mov_b32 s44, 0")
    I("s_mov_b32 s45, 0")
    g.label("L_stB")
    I("s_barrier")
    I("v_add_u32 v14, s45, v10")
    I("v_add_u32 v15, s45, v11")
    I(f"ds_read_b128 v[16:19], v14 offset:{STG_OFF}")
    I(f"ds_read_b128 v[20:23], v15 offset:{STG_OFF}")
    I("s_xor_b32 s45, s45, 4096")
    I("s_waitcnt lgkmcnt(1)")
    I(f"buffer_store_dwordx4 v[16:19], v12, s[12:15], s44 offen {opt.store_flags}")
    I("s_waitcnt lgkmcnt(0)")
    I(f"buffer_store_dwordx4 v[20:23], v13, s[12:15], s44 offen {opt.store_flags}")
    I("s_add_u32 s44, s44, 147456")
    I("s_sub_u32 s46, s46, 1")
    I("s_cmp_lg_u32 s46, 0")
    I("s_cbranch_scc1 L_stB")
    g.stamp(3)
    if opt.dbg: I("s_waitcnt vmcnt(0)")
    g.stamp(4); g.stamp(14, True)
    g.dump(2, 6, opt.dbgwg)
    I("s_endpgm")

    g.label("L_compute")
    if opt.prio_compute: I(f"s_setprio {opt.prio_compute}")
    WB = 112; ACC = 96; XR = 64; EP = 60; RAW = 16; LUTV = 96
    V_LB = 48
    V_RA = [2, 3, 4]
    V_X0 = [5, 6, 7]; V_X1 = [8, 9, 10]
    V_ST = 11
    I("v_and_b32 v12, 15, v0")
    I("v_lshrrev_b32 v13, 4, v0")
    I("s_lshl_b32 s39, s3, 7")
    I("v_lshl_add_u32 v15, v12, 3, s39")
    I("v_and_b32 v14, 1, v13")
    I("v_lshlrev_b32 v14, 7, v14")
    I("v_xor_b32 v15, v15, v14")
    I(f"v_lshl_add_u32 v{V_RA[0]}, v13, 12, v15")
    I(f"v_add_u32 v{V_RA[0]}, {RING_OFF}, v{V_RA[0]}")
    I(f"v_add_u32 v{V_RA[1]}, {3*SLOT}, v{V_RA[0]}")
    I(f"v_add_u32 v{V_RA[2]}, {6*SLOT}, v{V_RA[0]}")
    I("v_lshrrev_b32 v14, 1, v12")
    I("v_xor_b32 v14, v14, v13")
    I("v_lshlrev_b32 v14, 4, v14")
    I("v_and_b32 v15, 7, v12")
    I("v_lshl_add_u32 v14, v15, 7, v14")
    I("v_lshrrev_b32 v15, 3, v12")
    I("v_lshl_add_u32 v14, v15, 10, v14")
    I(f"v_add_u32 v{V_X0[0]}, {RING_OFF}, v14")
    I(f"v_xor_b32 v{V_X1[0]}, 64, v{V_X0[0]}")
    for k in (1, 2):
        I(f"v_add_u32 v{V_X0[k]}, {3*k*SLOT}, v{V_X0[0]}")
        I(f"v_add_u32 v{V_X1[k]}, {3*k*SLOT}, v{V_X1[0]}")
    I("s_lshl_b32 s39, s3, 2")
    I("v_add_u32 v14, s39, v13")
    I("v_xor_b32 v14, v14, v12")
    I("v_lshlrev_b32 v14, 4, v14")
    I(f"v_lshl_add_u32 v{V_ST}, v12, 8, v14")
    I("s_lshl_b32 s39, s3, 11")
    I("v_and_b32 v14, 31, v0")
    I(f"v_lshl_add_u32 v{V_LB}, v14, 2, s39")
    I(f"v_mov_b32 v{V_LB+1}, v{V_LB}")
    I("v_lshrrev_b32 v15, 5, v0")
    I(f"v_lshl_add_u32 v50, v15, 10, v{V_LB}")
    I("v_lshlrev_b32 v15, 4, v15")
    I("v_lshlrev_b32 v14, 2, v12")
    I("s_mov_b32 s50, 0x43000000")
    I("s_mov_b32 s51, 0x43000000")
    I("s_mov_b32 s52, 0x05040100")
    I("s_mov_b32 s53, 0x07060302")
    I("s_waitcnt lgkmcnt(0)")
    I("s_mov_b32 s16, s26")
    I("s_and_b32 s17, s27, 0xffff")
    I("s_mov_b32 s18, 9216")
    I("s_mov_b32 s19, 0x20000")
    I("s_mov_b32 s4, s24")
    I("s_and_b32 s5, s25, 0xffff")
    I("s_mov_b32 s6, 32")
    I("s_mov_b32 s7, 0x20000")
    I("s_lshl_b32 s38, s33, 8")
    I("s_lshl_b32 s39, s3, 6")
    I("s_add_u32 s38, s38, s39")
    I("buffer_load_dword v51, v14, s[16:19], s38 offen")
    I("buffer_load_dwordx4 v[52:55], v15, s[4:7], 0 offen")
    I("s_waitcnt vmcnt(0)")
    I("v_lshlrev_b32 v56, 16, v51")
    I("v_and_b32 v57, 0xffff0000, v51")
    for m in range(4):
        I(f"v_lshlrev_b32 v58, 16, v{52+m}")
        I(f"v_and_b32 v59, 0xffff0000, v{52+m}")
        for b in range(2):
            I(f"v_mul_f32 v60, v{58+b}, v56")
            I(f"v_mul_f32 v61, v{58+b}, v57")
            I(f"v_cvt_pk_bf16_f32 v{62+b}, v60, v61")
            I(f"ds_write_b32 v50, v{62+b} offset:{STG_OFF + (2*m+b)*128}")
    I("s_waitcnt lgkmcnt(0)")
    g.stamp(1)

    def slot_base(it):
        sl = it % NSLOT
        return sl // 3, (sl % 3) * SLOT
    def raw_reads(i):
        rb = RAW + (i % 2) * 16
        k, off = slot_base(i)
        for e in range(8):
            g.ds(f"ds_read_b64 {vr(rb + 2*e, 2)}, v{V_RA[k]} offset:{off + e*512}", R(rb + 2*e, 2))
    def lut(i, e):
        rb = RAW + (i % 2) * 16
        a = rb + 2*e
        g.need(R(a, 2))
        if opt.addr == "pk":
            I(f"v_pk_fma_f32 {vr(a,2)}, {vr(a,2)}, s[50:51], {vr(V_LB,2)}")
        else:
            for c in range(2):
                I(f"v_lshl_add_u32 v{a+c}, v{a+c}, 7, v{V_LB}")
        for c in range(2):
            if opt.comb == "perm":
                g.ds(f"ds_read_b32 v{LUTV+2*e+c}, v{a+c} offset:{STG_OFF}", [LUTV + 2*e + c])
            else:
                d = WB + (i*2+c)*4 + e//2
                op = "ds_read_u16_d16" if e % 2 == 0 else "ds_read_u16_d16_hi"
                g.ds(f"{op} v{d}, v{a+c} offset:{STG_OFF + 2*c}", [d])
    def comb(i, t):
        if opt.comb != "perm": return
        for c in range(2):
            ev = LUTV + 2*(2*t) + c; od = LUTV + 2*(2*t+1) + c
            g.need([ev, od])
            I(f"v_perm_b32 v{WB + (i*2+c)*4 + t}, v{od}, v{ev}, s{52+c}")
    def xread(gs):
        t, s = divmod(gs, 18)
        k, off = slot_base(NW + t)
        a = (V_X0 if (s & 1) == 0 else V_X1)[k]
        slot = gs % opt.RING
        g.ds(f"ds_read_b128 {vr(XR + slot*4, 4)}, v{a} offset:{off + (s >> 1) * 2048}", R(XR + slot*4, 4))
    def raw_read1(i, e):
        rb = RAW + (i % 2) * 16
        k, off = slot_base(i)
        g.ds(f"ds_read_b64 {vr(rb + 2*e, 2)}, v{V_RA[k]} offset:{off + e*512}", R(rb + 2*e, 2))
    I("s_barrier")
    g.stamp(2)
    raw_reads(0)
    for i in range(1, NW + 1):
        I("s_barrier")
        if i in (1, 6, 12, 18): g.stamp({1:3, 6:4, 12:5, 18:6}[i])
        for e in range(8):
            if i < NW: raw_read1(i, e)
            elif e < opt.D: xread(e)
            if e == 0 and i >= 2: comb(i-2, 2)
            if e == 1 and i >= 2: comb(i-2, 3)
            lut(i-1, e)
            if e == 5: comb(i-1, 0)
            if e == 7: comb(i-1, 1)
    comb(NW-1, 2); comb(NW-1, 3)
    if opt.comb != "perm":
        g.need(R(WB + (NW-1)*8, 8))
    def epi_cvt(par, r):
        a0 = ACC + par*8; a1 = a0 + 4
        I(f"v_cvt_pk_bf16_f32 v{EP+r}, v{a0+r}, v{a1+r}")
    def epi_write(par):
        g.ds(f"ds_write_b128 v{V_ST}, {vr(EP,4)} offset:{STG_OFF + par*4096}", [])
    def wait_epi():
        idx = -1
        for k, d in enumerate(g.lgkm):
            if len(d) == 0: idx = k
        if idx >= 0: g.wait_lgkm(len(g.lgkm) - 1 - idx)
    def item(t, last):
        par = t % 2
        for s in range(18):
            gs = t*18 + s
            xr = XR + (gs % opt.RING) * 4
            if opt.wait2 and s % 2 == 0 and s + 1 < 18:
                g.need(R(xr, 4) + R(XR + ((gs+1) % opt.RING) * 4, 4))
            else:
                g.need(R(xr, 4))
            for c in range(2):
                acc = ACC + par*8 + c*4
                src = "0" if s == 0 else vr(acc, 4)
                I(f"v_mfma_f32_16x16x32_bf16 {vr(acc,4)}, {vr(WB + (s*2+c)*4, 4)}, {vr(xr,4)}, {src}")
            if s == 18 - opt.D:
                wait_epi()
                I("s_barrier")
                if t in (0, 8, 16): g.stamp({0:8, 8:9, 16:10}[t])
            ns = s + opt.D
            if ns < 18 or not last:
                xread(gs + opt.D)
            if t > 0:
                if opt.epi0 <= s < opt.epi0 + 4: epi_cvt(1 - par, s - opt.epi0)
                if s == opt.epi0 + 4: epi_write(1 - par)
    g.stamp(7)
    for t in range(17): item(t, False)
    item(17, False)
    st = list(g.lgkm)
    I("s_cmp_eq_u32 s36, 19")
    I("s_cbranch_scc0 L_tail18")
    item(18, True)
    I("s_nop 7")
    for r in range(4): epi_cvt(0, r)
    epi_write(0)
    I("s_waitcnt lgkmcnt(0)")
    I("s_barrier")
    g.stamp(11); g.stamp(14, True)
    g.dump(0, 0, opt.dbgwg)
    I("s_endpgm")
    g.label("L_tail18")
    g.lgkm = st
    I("s_nop 7")
    for r in range(4): epi_cvt(1, r)
    epi_write(1)
    I("s_waitcnt lgkmcnt(0)")
    I("s_barrier")
    g.stamp(11); g.stamp(14, True)
    g.dump(0, 0, opt.dbgwg)
    g.label("L_exit")
    I("s_endpgm")
    g.raw('.section .rodata,"a"')
    g.raw(".p2align 6")
    g.raw(f".amdhsa_kernel {NAME}_kernel")
    g.raw("  .amdhsa_next_free_vgpr 256")
    g.raw(f"  .amdhsa_next_free_sgpr {96 if opt.dbg else 64}")
    g.raw("  .amdhsa_accum_offset 256")
    g.raw("  .amdhsa_group_segment_fixed_size 0")
    g.raw("  .amdhsa_kernarg_size 56")
    g.raw("  .amdhsa_user_sgpr_count 2")
    g.raw("  .amdhsa_user_sgpr_kernarg_segment_ptr 1")
    g.raw("  .amdhsa_system_sgpr_workgroup_id_x 1")
    g.raw("  .amdhsa_float_denorm_mode_32 3")
    g.raw(".end_amdhsa_kernel")
    return g.text()

if __name__ == "__main__":
    opt = Opt()
    for a in sys.argv[2:]:
        k, v = a.split("=")
        cur = getattr(opt, k)
        setattr(opt, k, type(cur)(v) if not isinstance(cur, bool) else v == "1")
    open(sys.argv[1], "w").write(build(opt))
```

```python
import sys
NAME = "standalone__normalfloat_lut_codebook_lookup__prompt"

class Opt:
    store_flags = "sc1"
    D = 6
    RING = 7
    A0 = 4
    AHEAD = 6
    prio_compute = 0
    prio_helper = 0
    addr = "pk"
    comb = "perm"
    rot = True
    wait2 = True
    dbg = False
    dbgwg = 0
    epi0 = 2
    xflags = ""
    wflags = ""
    xrot = True
    touch = True
    noepi = False
    dummy = 0
    lutwaves = 4
    p1 = 1
    raw2 = False
    nolut = False
    nowdma = False
    nocvt = False
    nowrite = False
    epi = "a"
    late = True
    wb64 = True
    noread = False
    nodma = False
    nostore = False
    nowait = False

STG_OFF = 0
RING_OFF = 8192
SLOT = 18432
NSLOT = 8
LDS_BYTES = RING_OFF + NSLOT * SLOT
NW = 18
NX = 19

class Gen:
    def __init__(self):
        self.lines = []
        self.lgkm = []
        self.dbg = False
    def raw(self, s): self.lines.append(s)
    def label(self, l): self.lines.append(l + ":")
    def ins(self, s): self.lines.append("    " + s)
    def ds(self, s, dests=()):
        if len(self.lgkm) >= 15:
            self.wait_lgkm(11)
        self.ins(s)
        self.lgkm.append(set(dests))
    def wait_lgkm(self, n):
        if len(self.lgkm) > n:
            self.ins(f"s_waitcnt lgkmcnt({n})")
            self.lgkm = self.lgkm[len(self.lgkm) - n:] if n > 0 else []
    def need(self, regs):
        regs = set(regs)
        last = -1
        for i, d in enumerate(self.lgkm):
            if d & regs: last = i
        if last >= 0: self.wait_lgkm(len(self.lgkm) - 1 - last)
    def stamp(self, k, real=False):
        if self.dbg:
            self.ins(f"s_{'memrealtime' if real else 'memtime'} s[{64+2*k}:{65+2*k}]")
    def dump(self, role, wavecond, dbgwg):
        if not self.dbg: return
        lab = f"L_nodump{role}_{len(self.lines)}"
        self.ins("s_waitcnt lgkmcnt(0) vmcnt(0)")
        self.ins(f"s_cmp_eq_u32 s2, {dbgwg}")
        self.ins(f"s_cbranch_scc0 {lab}")
        self.ins(f"s_cmp_eq_u32 s3, {wavecond}")
        self.ins(f"s_cbranch_scc0 {lab}")
        self.ins("s_load_dwordx2 s[60:61], s[0:1], 40")
        self.ins("s_waitcnt lgkmcnt(0)")
        self.ins("s_and_b32 s61, s61, 0xffff")
        self.ins("s_mov_b32 s62, 256")
        self.ins("s_mov_b32 s63, 0x20000")
        self.ins("v_mov_b32 v20, 0")
        for k in range(16):
            self.ins(f"v_writelane_b32 v20, s{64+2*k}, {k}")
        self.ins("v_mbcnt_lo_u32_b32 v21, -1, 0")
        self.ins("v_mbcnt_hi_u32_b32 v21, -1, v21")
        self.ins("v_cmp_gt_u32 vcc, 16, v21")
        self.ins(f"v_lshlrev_b32 v21, 2, v21")
        self.ins(f"v_add_u32 v21, {role*64}, v21")
        self.ins("s_and_saveexec_b64 s[58:59], vcc")
        self.ins("buffer_store_dword v20, v21, s[60:63], 0 offen")
        self.ins("s_waitcnt vmcnt(0)")
        self.label(lab)
    def wsdump(self):
        if not self.dbg: return
        lab = f"L_nows_{len(self.lines)}"
        self.ins("s_waitcnt lgkmcnt(0) vmcnt(0)")
        self.ins("s_cmp_eq_u32 s3, 6")
        self.ins(f"s_cbranch_scc0 {lab}")
        self.ins("s_load_dwordx2 s[60:61], s[0:1], 48")
        self.ins("s_waitcnt lgkmcnt(0)")
        self.ins("s_and_b32 s61, s61, 0xffff")
        self.ins("s_mov_b32 s62, 65536")
        self.ins("s_mov_b32 s63, 0x20000")
        self.ins("v_mov_b32 v20, 0")
        self.ins("v_writelane_b32 v20, s94, 0")
        self.ins("v_writelane_b32 v20, s90, 1")
        self.ins("v_writelane_b32 v20, s92, 2")
        self.ins("v_writelane_b32 v20, s2, 3")
        self.ins("v_mbcnt_lo_u32_b32 v21, -1, 0")
        self.ins("v_mbcnt_hi_u32_b32 v21, -1, v21")
        self.ins("v_cmp_gt_u32 vcc, 4, v21")
        self.ins("v_lshlrev_b32 v21, 2, v21")
        self.ins("s_lshl_b32 s59, s2, 4")
        self.ins("s_and_saveexec_b64 s[56:57], vcc")
        self.ins("buffer_store_dword v20, v21, s[60:63], s59 offen")
        self.ins("s_waitcnt vmcnt(0)")
        self.ins("s_mov_b64 exec, s[56:57]")
        self.label(lab)
    def text(self): return "\n".join(self.lines) + "\n"

def R(base, n): return list(range(base, base + n))
def vr(base, n): return f"v[{base}:{base+n-1}]" if n > 1 else f"v{base}"

def issue_schedule(opt):
    total = NW + NX
    sched = {-1: list(range(opt.A0))}
    nxt = opt.A0
    for i in range(0, total + 2):
        lst = []
        n = 1 if i < NW - 1 else 2
        while n > 0 and nxt < total and nxt <= i + opt.AHEAD:
            lst.append(nxt); nxt += 1; n -= 1
        sched[i] = lst
    assert nxt == total
    return sched

def build(opt):
    g = Gen(); g.dbg = opt.dbg
    I = g.ins
    g.raw(f"; @launch grid=(252,1,1) block=(512,1,1) lds={LDS_BYTES}")
    g.raw('.amdgcn_target "amdgcn-amd-amdhsa--gfx950"')
    g.raw(".text")
    g.raw(f".globl {NAME}_kernel")
    g.raw(".p2align 8")
    g.raw(f".type {NAME}_kernel,@function")
    g.label(f"{NAME}_kernel")
    I("s_cmp_ge_u32 s2, 252")
    I("s_cbranch_scc1 L_exit")
    g.stamp(0); g.stamp(15, True)
    I("s_load_dwordx4 s[20:23], s[0:1], 0")
    I("s_load_dwordx4 s[24:27], s[0:1], 16")
    I("s_load_dwordx2 s[28:29], s[0:1], 32")
    I("v_lshrrev_b32 v1, 6, v0")
    I("v_and_b32 v0, 63, v0")
    I("s_and_b32 s30, s2, 7")
    I("s_lshr_b32 s31, s2, 3")
    I("v_readfirstlane_b32 s3, v1")
    I("s_lshl_b32 s32, s30, 5")
    I("s_sub_i32 s33, s30, 4")
    I("s_max_i32 s33, s33, 0")
    I("s_sub_u32 s32, s32, s33")
    I("s_add_u32 s32, s32, s31")
    I("s_mul_i32 s33, s32, 9363")
    I("s_lshr_b32 s33, s33, 16")
    I("s_mul_i32 s34, s33, 7")
    I("s_sub_u32 s34, s32, s34")
    I("s_mul_i32 s35, s34, 18")
    I("s_min_u32 s36, s34, 2")
    I("s_add_u32 s35, s35, s36")
    I("s_cmp_lt_u32 s34, 2")
    I("s_cselect_b32 s36, 19, 18")
    if opt.xrot:
        I("s_mov_b32 s38, 3641")
        I("s_cselect_b32 s38, 3450, s38")
        I("s_lshl_b32 s39, s33, 2")
        I("s_mul_i32 s38, s38, s39")
        I("s_lshr_b32 s38, s38, 16")
        I("s_mul_i32 s38, s38, s36")
        I("s_sub_u32 s58, s39, s38")
    else:
        I("s_mov_b32 s58, 0")
    I("s_cmp_ge_u32 s3, 4")
    I("s_cbranch_scc0 L_compute")

    g.label("L_helper")
    if opt.prio_helper: I(f"s_setprio {opt.prio_helper}")
    I("s_sub_u32 s37, s3, 4")
    I("v_lshrrev_b32 v4, 5, v0")
    I("v_mul_u32_u24 v4, 18432, v4")
    I("v_and_b32 v5, 31, v0")
    I("s_and_b32 s38, s37, 1")
    I("s_lshl_b32 s38, s38, 3")
    I("v_xor_b32 v5, s38, v5")
    I("v_lshl_add_u32 v2, v5, 4, v4")
    if opt.rot:
        I("s_mul_i32 s47, s34, 9")
        I("s_add_u32 s47, s47, 3")
        I("s_mul_i32 s47, s47, 9363")
        I("s_lshr_b32 s47, s47, 16")
    else:
        I("s_mov_b32 s47, 0")
    I("s_mul_i32 s40, s47, 1179648")
    I("s_mul_i32 s42, s37, 147456")
    I("s_add_u32 s40, s40, s42")
    I("s_add_u32 s43, s42, 10616832")
    I("s_lshl_b32 s38, s37, 12")
    I("v_lshlrev_b32 v24, 4, v0")
    I("s_waitcnt lgkmcnt(0)")
    I("s_lshl_b32 s41, s33, 9")
    I("s_add_u32 s8, s22, s41")
    I("s_addc_u32 s9, s23, 0")
    I("s_and_b32 s9, s9, 0xffff")
    I("s_sub_u32 s10, 10616832, s41")
    I("s_mov_b32 s11, 0x20000")
    class Stream:
        def __init__(self): self.issued = []
    S = Stream()
    def issueW(it):
        slot = RING_OFF + (it % NSLOT) * SLOT
        I(f"s_add_u32 m0, s38, {slot}")
        I("s_mov_b32 s44, s40")
        for u in range(4):
            if not opt.nowdma:
                I(f"buffer_load_dwordx4 v2, s[8:11], s44 offen {opt.wflags} lds")
                S.issued.append(it)
            if u < 3:
                I("s_add_u32 m0, m0, 1024")
                I("s_add_u32 s44, s44, 36864")
        I("s_add_u32 s40, s40, 589824")
        I("s_cmp_ge_u32 s40, s43")
        I("s_cselect_b32 s45, 10616832, 0")
        I("s_sub_u32 s40, s40, s45")
    def issueX(it):
        slot = RING_OFF + (it % NSLOT) * SLOT
        I(f"s_add_u32 m0, s39, {slot}")
        for c in range(9):
            I(f"s_add_u32 s44, s{48+c}, s57")
            if not opt.nodma:
                I(f"buffer_load_dwordx4 v6, s[4:7], s44 offen {opt.xflags} lds")
                S.issued.append(it)
            if c < 8:
                I("s_add_u32 m0, m0, 2048")
        I("s_add_u32 s57, s57, 18432")
        I("s_cmp_eq_u32 s57, s6")
        I("s_cselect_b32 s57, 0, s57")
    def wait_item(it):
        n = sum(1 for x in S.issued if x > it)
        assert n <= 63
        if any(x == it for x in S.issued) or it < NW:
            I(f"s_waitcnt vmcnt({n})")
    sched = issue_schedule(opt)
    for it in sched[-1]: issueW(it)
    if opt.touch:
        I("s_mov_b32 s4, s20")
        I("s_and_b32 s5, s21, 0xffff")
        I("s_mov_b32 s6, 2359296")
        I("s_mov_b32 s7, 0x20000")
        I("s_mul_i32 s41, s32, 9360")
        I("s_mul_i32 s42, s37, 3072")
        I("s_add_u32 s41, s41, s42")
        for u in range(3):
            I(f"buffer_load_dwordx4 v[{28+4*u}:{31+4*u}], v24, s[4:7], s41 offen offset:{u*1024}")
            S.issued.append(opt.A0 - 0.5)
    g.stamp(1)
    lastW = max(i for i in sched if any(it < NW for it in sched[i]))
    assert all(it < NW for i in range(-1, lastW) for it in sched[i])
    for i in range(0, lastW + 1):
        wait_item(i)
        if i == 0: g.stamp(2)
        I("s_barrier")
        if i in (6, 12): g.stamp({6:3, 12:4}[i])
        for it in sched[i]:
            if it < NW: issueW(it)
        if opt.dummy:
            I("v_lshlrev_b32 v50, 2, v0")
            for u in range(opt.dummy):
                if u % 12 == 11: I("s_waitcnt lgkmcnt(4)")
                I(f"ds_read_b32 v{60 + u % 16}, v50 offset:{(u % 16) * 128}")
            I("s_waitcnt lgkmcnt(0)")
    I("s_cmp_ge_u32 s3, 6")
    I("s_cbranch_scc1 L_storer")
    saved = list(S.issued)
    I("v_lshrrev_b32 v7, 3, v0")
    I("v_lshrrev_b32 v8, 1, v7")
    I("s_lshl_b32 s38, s37, 2")
    I("v_add_u32 v8, s38, v8")
    I("v_and_b32 v9, 7, v0")
    I("v_xor_b32 v8, v8, v9")
    I("v_mul_u32_u24 v7, 1152, v7")
    I("v_lshl_add_u32 v6, v8, 4, v7")
    I("s_mul_i32 s42, s37, 9216")
    for c in range(9):
        I(f"s_add_u32 s44, s47, {c}")
        I("s_cmp_ge_u32 s44, 9")
        I("s_cselect_b32 s45, 9, 0")
        I("s_sub_u32 s44, s44, s45")
        I("s_lshl_b32 s44, s44, 7")
        I(f"s_add_u32 s{48+c}, s44, s42")
    I("s_lshl_b32 s39, s37, 10")
    I("s_mul_i32 s41, s35, 18432")
    I("s_add_u32 s4, s20, s41")
    I("s_addc_u32 s5, s21, 0")
    I("s_and_b32 s5, s5, 0xffff")
    I("s_mul_i32 s6, s36, 18432")
    I("s_mov_b32 s7, 0x20000")
    I("s_mul_i32 s57, s58, 18432")
    for it in sched[lastW]:
        if it >= NW: issueX(it)
    for i in range(lastW + 1, 37):
        wait_item(i)
        I("s_barrier")
        if i in (18, 24): g.stamp({18:5, 24:6}[i])
        for it in sched.get(i, []): issueX(it)
    g.stamp(7)
    I("s_barrier")
    I("s_cmp_eq_u32 s36, 19")
    I("s_cbranch_scc0 L_ld_end")
    I("s_barrier")
    g.label("L_ld_end")
    g.stamp(8); g.stamp(14, True)
    g.dump(1, 4, opt.dbgwg)
    I("s_endpgm")

    g.label("L_storer")
    S.issued = saved
    I("s_sub_u32 s37, s3, 6")
    I("v_lshrrev_b32 v4, 4, v0")
    I("s_lshl_b32 s38, s37, 3")
    I("v_add_u32 v4, s38, v4")
    I("v_and_b32 v5, 15, v0")
    for u in range(2):
        I(f"v_add_u32 v8, {4*u}, v4")
        I("v_xor_b32 v9, v5, v8")
        I("v_lshlrev_b32 v9, 4, v9")
        I(f"v_lshl_add_u32 v{10+u}, v8, 8, v9")
        I("v_mul_u32_u24 v8, 9216, v8")
        I(f"v_lshl_add_u32 v{12+u}, v5, 4, v8")
    I("s_mul_i32 s39, s35, 147456")
    I("s_lshl_b32 s38, s33, 8")
    I("s_add_u32 s39, s39, s38")
    I("s_add_u32 s12, s28, s39")
    I("s_addc_u32 s13, s29, 0")
    I("s_and_b32 s13, s13, 0xffff")
    I("s_mul_i32 s14, s36, 147456")
    I("s_sub_u32 s14, s14, s38")
    I("s_mov_b32 s15, 0x20000")
    for i in range(lastW + 1, NW):
        wait_item(i)
        I("s_barrier")
    nskip = 3 if opt.late else 2
    for i in range(nskip): I("s_barrier")
    g.stamp(2); g.stamp(13, True)
    I("s_mul_i32 s44, s58, 147456")
    I("s_mul_i32 s47, s36, 147456")
    I("s_mov_b32 s45, 0")
    def store_block():
        I("v_add_u32 v14, s45, v10")
        I("v_add_u32 v15, s45, v11")
        I(f"ds_read_b128 v[16:19], v14 offset:{STG_OFF}")
        I(f"ds_read_b128 v[20:23], v15 offset:{STG_OFF}")
        I("s_xor_b32 s45, s45, 4096")
        I("s_waitcnt lgkmcnt(1)")
        if not opt.nostore: I(f"buffer_store_dwordx4 v[16:19], v12, s[12:15], s44 offen {opt.store_flags}")
        I("s_waitcnt lgkmcnt(0)")
        if not opt.nostore: I(f"buffer_store_dwordx4 v[20:23], v13, s[12:15], s44 offen {opt.store_flags}")
        I("s_add_u32 s44, s44, 147456")
        I("s_cmp_eq_u32 s44, s47")
        I("s_cselect_b32 s44, 0, s44")
    if opt.late:
        I("s_sub_u32 s46, s36, 2")
    else:
        I("s_mov_b32 s46, s36")
    g.label("L_stB")
    I("s_barrier")
    store_block()
    I("s_sub_u32 s46, s46, 1")
    I("s_cmp_lg_u32 s46, 0")
    I("s_cbranch_scc1 L_stB")
    if opt.late:
        I("s_barrier")
        store_block()
        store_block()
    g.stamp(3)
    if opt.dbg: I("s_waitcnt vmcnt(0)")
    g.stamp(4); g.stamp(14, True)
    g.wsdump()
    g.dump(2, 6, opt.dbgwg)
    I("s_endpgm")

    g.label("L_compute")
    if opt.prio_compute: I(f"s_setprio {opt.prio_compute}")
    WB = 112; ACC = 96; XR = 64; EP = 60; RAW = 16; LUTV = 96
    V_LB = 48
    V_RA = [2, 3, 4]
    V_X0 = [5, 6, 7]; V_X1 = [8, 9, 10]
    V_ST = 11
    I("v_and_b32 v12, 15, v0")
    I("v_lshrrev_b32 v13, 4, v0")
    I("s_lshl_b32 s39, s3, 7")
    I("v_lshl_add_u32 v15, v12, 3, s39")
    I("v_and_b32 v14, 1, v13")
    I("v_lshlrev_b32 v14, 7, v14")
    I("v_xor_b32 v15, v15, v14")
    I(f"v_lshl_add_u32 v{V_RA[0]}, v13, 12, v15")
    I(f"v_add_u32 v{V_RA[0]}, {RING_OFF}, v{V_RA[0]}")
    I(f"v_add_u32 v{V_RA[1]}, {3*SLOT}, v{V_RA[0]}")
    I(f"v_add_u32 v{V_RA[2]}, {6*SLOT}, v{V_RA[0]}")
    I("v_lshrrev_b32 v14, 1, v12")
    I("v_xor_b32 v14, v14, v13")
    I("v_lshlrev_b32 v14, 4, v14")
    I("v_and_b32 v15, 7, v12")
    I("v_lshl_add_u32 v14, v15, 7, v14")
    I("v_lshrrev_b32 v15, 3, v12")
    I("v_lshl_add_u32 v14, v15, 10, v14")
    I(f"v_add_u32 v{V_X0[0]}, {RING_OFF}, v14")
    I(f"v_xor_b32 v{V_X1[0]}, 64, v{V_X0[0]}")
    for k in (1, 2):
        I(f"v_add_u32 v{V_X0[k]}, {3*k*SLOT}, v{V_X0[0]}")
        I(f"v_add_u32 v{V_X1[k]}, {3*k*SLOT}, v{V_X1[0]}")
    I("s_lshl_b32 s39, s3, 2")
    I("v_add_u32 v14, s39, v13")
    I("v_xor_b32 v14, v14, v12")
    I("v_lshlrev_b32 v14, 4, v14")
    I(f"v_lshl_add_u32 v{V_ST}, v12, 8, v14")
    I("s_lshl_b32 s39, s3, 11")
    I("v_and_b32 v14, 31, v0")
    I(f"v_lshl_add_u32 v{V_LB}, v14, 2, s39")
    I(f"v_mov_b32 v{V_LB+1}, v{V_LB}")
    I("v_lshrrev_b32 v15, 5, v0")
    I(f"v_lshl_add_u32 v50, v15, 10, v{V_LB}")
    I("v_lshlrev_b32 v15, 4, v15")
    I("v_lshlrev_b32 v14, 2, v12")
    I("s_mov_b32 s50, 0x43000000")
    I("s_mov_b32 s51, 0x43000000")
    I("s_mov_b32 s52, 0x05040100")
    I("s_mov_b32 s53, 0x07060302")
    I("s_waitcnt lgkmcnt(0)")
    I("s_mov_b32 s16, s26")
    I("s_and_b32 s17, s27, 0xffff")
    I("s_mov_b32 s18, 9216")
    I("s_mov_b32 s19, 0x20000")
    I("s_mov_b32 s4, s24")
    I("s_and_b32 s5, s25, 0xffff")
    I("s_mov_b32 s6, 32")
    I("s_mov_b32 s7, 0x20000")
    I("s_lshl_b32 s38, s33, 8")
    I("s_lshl_b32 s39, s3, 6")
    I("s_add_u32 s38, s38, s39")
    I("buffer_load_dword v51, v14, s[16:19], s38 offen")
    I("buffer_load_dwordx4 v[52:55], v15, s[4:7], 0 offen")
    I("s_waitcnt vmcnt(0)")
    I("v_lshlrev_b32 v56, 16, v51")
    I("v_and_b32 v57, 0xffff0000, v51")
    for m in range(4):
        I(f"v_lshlrev_b32 v58, 16, v{52+m}")
        I(f"v_and_b32 v59, 0xffff0000, v{52+m}")
        for b in range(2):
            I(f"v_mul_f32 v60, v{58+b}, v56")
            I(f"v_mul_f32 v61, v{58+b}, v57")
            I(f"v_cvt_pk_bf16_f32 v{62+b}, v60, v61")
            I(f"ds_write_b32 v50, v{62+b} offset:{STG_OFF + (2*m+b)*128}")
    I("s_waitcnt lgkmcnt(0)")
    g.stamp(1)

    def slot_base(it):
        sl = it % NSLOT
        return sl // 3, (sl % 3) * SLOT
    def raw_reads(i):
        rb = RAW + (i % 2) * 16
        k, off = slot_base(i)
        for e in range(8):
            g.ds(f"ds_read_b64 {vr(rb + 2*e, 2)}, v{V_RA[k]} offset:{off + e*512}", R(rb + 2*e, 2))
    def lut_addr(i, e):
        if opt.nolut: return
        rb = RAW + (i % 2) * 16
        a = rb + 2*e
        g.need(R(a, 2))
        if opt.addr == "pk":
            I(f"v_pk_fma_f32 {vr(a,2)}, {vr(a,2)}, s[50:51], {vr(V_LB,2)}")
        else:
            for c in range(2):
                I(f"v_lshl_add_u32 v{a+c}, v{a+c}, 7, v{V_LB}")
    def lut_read(i, e):
        if opt.nolut: return
        rb = RAW + (i % 2) * 16
        a = rb + 2*e
        for c in range(2):
            if opt.comb == "perm":
                g.ds(f"ds_read_b32 v{LUTV+2*e+c}, v{a+c} offset:{STG_OFF}", [LUTV + 2*e + c])
            else:
                d = WB + (i*2+c)*4 + e//2
                op = "ds_read_u16_d16" if e % 2 == 0 else "ds_read_u16_d16_hi"
                g.ds(f"{op} v{d}, v{a+c} offset:{STG_OFF + 2*c}", [d])
    def lut(i, e):
        lut_addr(i, e); lut_read(i, e)
    def comb(i, t):
        if opt.comb != "perm" or opt.nolut: return
        for c in range(2):
            ev = LUTV + 2*(2*t) + c; od = LUTV + 2*(2*t+1) + c
            g.need([ev, od])
            I(f"v_perm_b32 v{WB + (i*2+c)*4 + t}, v{od}, v{ev}, s{52+c}")
    def xread(gs):
        t, s = divmod(gs, 18)
        k, off = slot_base(NW + t)
        a = (V_X0 if (s & 1) == 0 else V_X1)[k]
        slot = gs % opt.RING
        g.ds(f"ds_read_b128 {vr(XR + slot*4, 4)}, v{a} offset:{off + (s >> 1) * 2048}", R(XR + slot*4, 4))
    def raw_read1(i, e):
        rb = RAW + (i % 2) * 16
        k, off = slot_base(i)
        g.ds(f"ds_read_b64 {vr(rb + 2*e, 2)}, v{V_RA[k]} offset:{off + e*512}", R(rb + 2*e, 2))
    def raw_read2(i, e):
        rb = RAW + (i % 2) * 16
        k, off = slot_base(i)
        o = off // 512 + e
        g.ds(f"ds_read2st64_b64 {vr(rb + 2*e, 4)}, v{V_RA[k]} offset0:{o} offset1:{o+1}", R(rb + 2*e, 4))
    if opt.lutwaves < 4:
        I(f"s_cmp_ge_u32 s3, {opt.lutwaves}")
        I("s_cbranch_scc0 L_p1go")
        for _ in range(19): I("s_barrier")
        I("s_branch L_p2go")
        g.label("L_p1go")
    I("s_barrier")
    g.stamp(2)
    raw_reads(0)
    for i in range(1, NW + 1):
        I("s_barrier")
        if i in (1, 6, 12, 18): g.stamp({1:3, 6:4, 12:5, 18:6}[i])
        if opt.p1 == 0:
            for e in range(8):
                if i < NW: raw_read1(i, e)
                elif e < opt.D: xread(e)
                if e == 0 and i >= 2: comb(i-2, 2)
                if e == 1 and i >= 2: comb(i-2, 3)
                lut(i-1, e)
                if e == 5: comb(i-1, 0)
                if e == 7: comb(i-1, 1)
        else:
            lut_addr(i-1, 0); lut_addr(i-1, 1)
            if i >= 2: comb(i-2, 2)
            if i >= 2: comb(i-2, 3)
            for e in range(8):
                if e + 2 < 8: lut_addr(i-1, e+2)
                lut_read(i-1, e)
                if i < NW:
                    if opt.raw2:
                        if e % 2 == 1: raw_read2(i, e-1)
                    else: raw_read1(i, e)
                elif e < opt.D: xread(e)
                if e == 5: comb(i-1, 0)
                if e == 7: comb(i-1, 1)
    comb(NW-1, 2); comb(NW-1, 3)
    if opt.comb != "perm":
        g.need(R(WB + (NW-1)*8, 8))
    if opt.lutwaves < 4:
        g.wait_lgkm(0)
        g.label("L_p2go")
    def epi_cvt(par, r):
        if opt.nocvt: return
        a0 = ACC + par*8; a1 = a0 + 4
        I(f"v_cvt_pk_bf16_f32 v{EP+r}, v{a0+r}, v{a1+r}")
    def epi_write(par, part=None):
        if opt.nowrite: return
        if part is None:
            g.ds(f"ds_write_b128 v{V_ST}, {vr(EP,4)} offset:{STG_OFF + par*4096}", [])
        else:
            g.ds(f"ds_write_b64 v{V_ST}, {vr(EP+2*part,2)} offset:{STG_OFF + par*4096 + 8*part}", [])
    def wait_epi():
        idx = -1
        for k, d in enumerate(g.lgkm):
            if len(d) == 0: idx = k
        if idx >= 0: g.wait_lgkm(len(g.lgkm) - 1 - idx)
    def item(t, last):
        par = t % 2
        sb = 17 - opt.D
        for s in range(18):
            gs = t*18 + s
            xr = XR + (gs % opt.RING) * 4
            if opt.nowait:
                pass
            elif opt.wait2 and s % 2 == 0 and s + 1 < 18:
                g.need(R(xr, 4) + R(XR + ((gs+1) % opt.RING) * 4, 4))
            else:
                g.need(R(xr, 4))
            def mf(c):
                acc = ACC + par*8 + c*4
                src = "0" if s == 0 else vr(acc, 4)
                I(f"v_mfma_f32_16x16x32_bf16 {vr(acc,4)}, {vr(WB + (s*2+c)*4, 4)}, {vr(xr,4)}, {src}")
            mf(0)
            ns = s + opt.D
            if (ns < 18 or not last) and not opt.noread:
                xread(gs + opt.D)
            e0 = (sb - 3) if opt.late else opt.epi0
            if t > 0 and not opt.noepi:
                if e0 <= s < e0 + 4: epi_cvt(1 - par, s - e0)
            mf(1)
            if t > 0 and not opt.noepi:
                w0 = (sb + 1) if opt.late else e0 + 4
                if opt.wb64:
                    if s == w0: epi_write(1 - par, 0)
                    if s == w0 + 2: epi_write(1 - par, 1)
                elif s == w0: epi_write(1 - par)
            if s == sb:
                wait_epi()
                I("s_barrier")
                if t in (0, 8, 16): g.stamp({0:8, 8:9, 16:10}[t])
    g.stamp(7)
    for t in range(17): item(t, False)
    item(17, False)
    st = list(g.lgkm)
    I("s_cmp_eq_u32 s36, 19")
    I("s_cbranch_scc0 L_tail18")
    item(18, True)
    I("s_nop 7")
    for r in range(4): epi_cvt(0, r)
    epi_write(0)
    I("s_waitcnt lgkmcnt(0)")
    I("s_barrier")
    g.stamp(11); g.stamp(14, True)
    g.dump(0, 0, opt.dbgwg)
    I("s_endpgm")
    g.label("L_tail18")
    g.lgkm = st
    I("s_nop 7")
    for r in range(4): epi_cvt(1, r)
    epi_write(1)
    I("s_waitcnt lgkmcnt(0)")
    I("s_barrier")
    g.stamp(11); g.stamp(14, True)
    g.dump(0, 0, opt.dbgwg)
    g.label("L_exit")
    I("s_endpgm")
    g.raw('.section .rodata,"a"')
    g.raw(".p2align 6")
    g.raw(f".amdhsa_kernel {NAME}_kernel")
    g.raw("  .amdhsa_next_free_vgpr 256")
    g.raw(f"  .amdhsa_next_free_sgpr {96 if opt.dbg else 64}")
    g.raw("  .amdhsa_accum_offset 256")
    g.raw("  .amdhsa_group_segment_fixed_size 0")
    g.raw("  .amdhsa_kernarg_size 56")
    g.raw("  .amdhsa_user_sgpr_count 2")
    g.raw("  .amdhsa_user_sgpr_kernarg_segment_ptr 1")
    g.raw("  .amdhsa_system_sgpr_workgroup_id_x 1")
    g.raw("  .amdhsa_float_denorm_mode_32 3")
    g.raw(".end_amdhsa_kernel")
    return g.text()

if __name__ == "__main__":
    opt = Opt()
    for a in sys.argv[2:]:
        k, v = a.split("=")
        cur = getattr(opt, k)
        setattr(opt, k, type(cur)(v) if not isinstance(cur, bool) else v == "1")
    open(sys.argv[1], "w").write(build(opt))
```

```python
import sys
NAME = "standalone__normalfloat_lut_codebook_lookup__prompt"

class Opt:
    store_flags = "sc1"
    D = 6
    RING = 7
    A0 = 4
    AHEAD = 6
    prio_compute = 0
    prio_helper = 0
    addr = "pk"
    comb = "perm"
    rot = False
    wtouch = 2
    tflags = ""
    PT = 1
    wait2 = True
    dbg = False
    dbgwg = 0
    epi0 = 2
    xflags = ""
    wflags = ""
    xrot = False
    touch = True
    noepi = False
    dummy = 0
    lutwaves = 4
    p1 = 1
    raw2 = False
    nolut = False
    nowdma = False
    nocvt = False
    nowrite = False
    epi = "a"
    late = True
    wb64 = True
    noread = False
    nodma = False
    nostore = False
    nowait = False

STG_OFF = 0
RING_OFF = 8192
SLOT = 18432
NSLOT = 8
LDS_BYTES = RING_OFF + NSLOT * SLOT
NW = 18
NX = 19

class Gen:
    def __init__(self):
        self.lines = []
        self.lgkm = []
        self.dbg = False
    def raw(self, s): self.lines.append(s)
    def label(self, l): self.lines.append(l + ":")
    def ins(self, s): self.lines.append("    " + s)
    def ds(self, s, dests=()):
        if len(self.lgkm) >= 15:
            self.wait_lgkm(11)
        self.ins(s)
        self.lgkm.append(set(dests))
    def wait_lgkm(self, n):
        if len(self.lgkm) > n:
            self.ins(f"s_waitcnt lgkmcnt({n})")
            self.lgkm = self.lgkm[len(self.lgkm) - n:] if n > 0 else []
    def need(self, regs):
        regs = set(regs)
        last = -1
        for i, d in enumerate(self.lgkm):
            if d & regs: last = i
        if last >= 0: self.wait_lgkm(len(self.lgkm) - 1 - last)
    def stamp(self, k, real=False):
        if self.dbg:
            self.ins(f"s_{'memrealtime' if real else 'memtime'} s[{64+2*k}:{65+2*k}]")
    def dump(self, role, wavecond, dbgwg):
        if not self.dbg: return
        lab = f"L_nodump{role}_{len(self.lines)}"
        self.ins("s_waitcnt lgkmcnt(0) vmcnt(0)")
        self.ins(f"s_cmp_eq_u32 s2, {dbgwg}")
        self.ins(f"s_cbranch_scc0 {lab}")
        self.ins(f"s_cmp_eq_u32 s3, {wavecond}")
        self.ins(f"s_cbranch_scc0 {lab}")
        self.ins("s_load_dwordx2 s[60:61], s[0:1], 40")
        self.ins("s_waitcnt lgkmcnt(0)")
        self.ins("s_and_b32 s61, s61, 0xffff")
        self.ins("s_mov_b32 s62, 256")
        self.ins("s_mov_b32 s63, 0x20000")
        self.ins("v_mov_b32 v20, 0")
        for k in range(16):
            self.ins(f"v_writelane_b32 v20, s{64+2*k}, {k}")
        self.ins("v_mbcnt_lo_u32_b32 v21, -1, 0")
        self.ins("v_mbcnt_hi_u32_b32 v21, -1, v21")
        self.ins("v_cmp_gt_u32 vcc, 16, v21")
        self.ins(f"v_lshlrev_b32 v21, 2, v21")
        self.ins(f"v_add_u32 v21, {role*64}, v21")
        self.ins("s_and_saveexec_b64 s[58:59], vcc")
        self.ins("buffer_store_dword v20, v21, s[60:63], 0 offen")
        self.ins("s_waitcnt vmcnt(0)")
        self.label(lab)
    def wsdump(self):
        if not self.dbg: return
        lab = f"L_nows_{len(self.lines)}"
        self.ins("s_waitcnt lgkmcnt(0) vmcnt(0)")
        self.ins("s_cmp_eq_u32 s3, 6")
        self.ins(f"s_cbranch_scc0 {lab}")
        self.ins("s_load_dwordx2 s[60:61], s[0:1], 48")
        self.ins("s_waitcnt lgkmcnt(0)")
        self.ins("s_and_b32 s61, s61, 0xffff")
        self.ins("s_mov_b32 s62, 65536")
        self.ins("s_mov_b32 s63, 0x20000")
        self.ins("v_mov_b32 v20, 0")
        self.ins("v_writelane_b32 v20, s94, 0")
        self.ins("v_writelane_b32 v20, s90, 1")
        self.ins("v_writelane_b32 v20, s92, 2")
        self.ins("v_writelane_b32 v20, s2, 3")
        self.ins("v_mbcnt_lo_u32_b32 v21, -1, 0")
        self.ins("v_mbcnt_hi_u32_b32 v21, -1, v21")
        self.ins("v_cmp_gt_u32 vcc, 4, v21")
        self.ins("v_lshlrev_b32 v21, 2, v21")
        self.ins("s_lshl_b32 s59, s2, 4")
        self.ins("s_and_saveexec_b64 s[56:57], vcc")
        self.ins("buffer_store_dword v20, v21, s[60:63], s59 offen")
        self.ins("s_waitcnt vmcnt(0)")
        self.ins("s_mov_b64 exec, s[56:57]")
        self.label(lab)
    def text(self): return "\n".join(self.lines) + "\n"

def R(base, n): return list(range(base, base + n))
def vr(base, n): return f"v[{base}:{base+n-1}]" if n > 1 else f"v{base}"

def barriers(opt):
    l = list(range(opt.PT - 1, NW, opt.PT))
    assert l[-1] == NW - 1
    return l + list(range(NW, NW + NX))

def issue_schedule(opt):
    total = NW + NX
    sched = {-1: list(range(opt.A0))}
    nxt = opt.A0
    for b in barriers(opt):
        lst = []
        if b < NW:
            n = opt.PT if b < NW - 2 else 2
            lim = b + opt.AHEAD if opt.PT == 1 else b + NSLOT - 2 * opt.PT
        else:
            n = 2 if b == NW else 1
            lim = b + opt.AHEAD
        while n > 0 and nxt < total and nxt <= lim:
            lst.append(nxt); nxt += 1; n -= 1
        sched[b] = lst
    assert nxt == total
    return sched

def build(opt):
    g = Gen(); g.dbg = opt.dbg
    I = g.ins
    g.raw(f"; @launch grid=(252,1,1) block=(512,1,1) lds={LDS_BYTES}")
    g.raw('.amdgcn_target "amdgcn-amd-amdhsa--gfx950"')
    g.raw(".text")
    g.raw(f".globl {NAME}_kernel")
    g.raw(".p2align 8")
    g.raw(f".type {NAME}_kernel,@function")
    g.label(f"{NAME}_kernel")
    I("s_cmp_ge_u32 s2, 252")
    I("s_cbranch_scc1 L_exit")
    g.stamp(0); g.stamp(15, True)
    I("s_load_dwordx4 s[20:23], s[0:1], 0")
    I("s_load_dwordx4 s[24:27], s[0:1], 16")
    I("s_load_dwordx2 s[28:29], s[0:1], 32")
    I("v_lshrrev_b32 v1, 6, v0")
    I("v_and_b32 v0, 63, v0")
    I("s_and_b32 s30, s2, 7")
    I("s_lshr_b32 s31, s2, 3")
    I("v_readfirstlane_b32 s3, v1")
    I("s_lshl_b32 s32, s30, 5")
    I("s_sub_i32 s33, s30, 4")
    I("s_max_i32 s33, s33, 0")
    I("s_sub_u32 s32, s32, s33")
    I("s_add_u32 s32, s32, s31")
    I("s_mul_i32 s33, s32, 9363")
    I("s_lshr_b32 s33, s33, 16")
    I("s_mul_i32 s34, s33, 7")
    I("s_sub_u32 s34, s32, s34")
    I("s_mul_i32 s35, s34, 18")
    I("s_min_u32 s36, s34, 2")
    I("s_add_u32 s35, s35, s36")
    I("s_cmp_lt_u32 s34, 2")
    I("s_cselect_b32 s36, 19, 18")
    if opt.xrot:
        I("s_mov_b32 s38, 3641")
        I("s_cselect_b32 s38, 3450, s38")
        I("s_lshl_b32 s39, s33, 2")
        I("s_mul_i32 s38, s38, s39")
        I("s_lshr_b32 s38, s38, 16")
        I("s_mul_i32 s38, s38, s36")
        I("s_sub_u32 s58, s39, s38")
    else:
        I("s_mov_b32 s58, 0")
    I("s_cmp_ge_u32 s3, 4")
    I("s_cbranch_scc0 L_compute")

    g.label("L_helper")
    if opt.prio_helper: I(f"s_setprio {opt.prio_helper}")
    I("s_cmp_ge_u32 s3, 6")
    I("s_cbranch_scc1 L_storer")
    I("s_sub_u32 s37, s3, 4")
    I("v_lshrrev_b32 v4, 5, v0")
    I("v_mul_u32_u24 v4, 18432, v4")
    I("v_and_b32 v5, 31, v0")
    I("v_lshl_add_u32 v2, v5, 4, v4")
    I("v_xor_b32 v5, 8, v5")
    I("v_lshl_add_u32 v3, v5, 4, v4")
    if opt.rot:
        I("s_mul_i32 s47, s34, 9")
        I("s_add_u32 s47, s47, 3")
        I("s_mul_i32 s47, s47, 9363")
        I("s_lshr_b32 s47, s47, 16")
    else:
        I("s_mov_b32 s47, 0")
    I("s_mul_i32 s40, s47, 1179648")
    I("s_mul_i32 s42, s37, 294912")
    I("s_add_u32 s40, s40, s42")
    I("s_add_u32 s43, s42, 10616832")
    I("s_lshl_b32 s38, s37, 13")
    I("s_waitcnt lgkmcnt(0)")
    I("s_lshl_b32 s41, s33, 9")
    I("s_add_u32 s8, s22, s41")
    I("s_addc_u32 s9, s23, 0")
    I("s_and_b32 s9, s9, 0xffff")
    I("s_sub_u32 s10, 10616832, s41")
    I("s_mov_b32 s11, 0x20000")
    issued = []
    def issueW(it):
        slot = RING_OFF + (it % NSLOT) * SLOT
        I(f"s_add_u32 m0, s38, {slot}")
        I("s_mov_b32 s44, s40")
        for u in range(8):
            v = "v2" if u < 4 else "v3"
            if not opt.nowdma:
                I(f"buffer_load_dwordx4 {v}, s[8:11], s44 offen {opt.wflags} lds")
                issued.append(it)
            if u < 7:
                I("s_add_u32 m0, m0, 1024")
                I("s_add_u32 s44, s44, 36864")
        if opt.rot:
            I("s_add_u32 s40, s40, 589824")
            I("s_cmp_ge_u32 s40, s43")
            I("s_cselect_b32 s45, 10616832, 0")
            I("s_sub_u32 s40, s40, s45")
        else:
            I("s_add_u32 s40, s40, 589824")
    def issueX(it):
        slot = RING_OFF + (it % NSLOT) * SLOT
        I(f"s_add_u32 m0, s39, {slot}")
        for c in range(9):
            I(f"s_add_u32 s44, s{48+c}, s57")
            if not opt.nodma:
                I(f"buffer_load_dwordx4 v6, s[4:7], s44 offen {opt.xflags} lds")
                issued.append(it)
            if c < 8:
                I("s_add_u32 m0, m0, 2048")
        I("s_add_u32 s57, s57, 18432")
        I("s_cmp_eq_u32 s57, s6")
        I("s_cselect_b32 s57, 0, s57")
    def wait_item(it):
        n = sum(1 for x in issued if x > it)
        assert n <= 63
        I(f"s_waitcnt vmcnt({n})")
    sched = issue_schedule(opt)
    for it in sched[-1]: issueW(it)
    g.stamp(1)
    I("v_lshrrev_b32 v7, 3, v0")
    I("v_lshrrev_b32 v8, 1, v7")
    I("s_lshl_b32 s42, s37, 2")
    I("v_add_u32 v8, s42, v8")
    I("v_and_b32 v9, 7, v0")
    I("v_xor_b32 v8, v8, v9")
    I("v_mul_u32_u24 v7, 1152, v7")
    I("v_lshl_add_u32 v6, v8, 4, v7")
    I("s_mul_i32 s42, s37, 9216")
    for c in range(9):
        I(f"s_add_u32 s44, s47, {c}")
        I("s_cmp_ge_u32 s44, 9")
        I("s_cselect_b32 s45, 9, 0")
        I("s_sub_u32 s44, s44, s45")
        I("s_lshl_b32 s44, s44, 7")
        I(f"s_add_u32 s{48+c}, s44, s42")
    I("s_lshl_b32 s39, s37, 10")
    I("s_mul_i32 s41, s35, 18432")
    I("s_add_u32 s4, s20, s41")
    I("s_addc_u32 s5, s21, 0")
    I("s_and_b32 s5, s5, 0xffff")
    I("s_mul_i32 s6, s36, 18432")
    I("s_mov_b32 s7, 0x20000")
    I("s_mul_i32 s57, s58, 18432")
    for bi in barriers(opt):
        wait_item(bi)
        if bi <= opt.PT - 1: g.stamp(2)
        I("s_barrier")
        if bi in (6, 7, 12, 13, 18, 24): g.stamp({6:3, 7:3, 12:4, 13:4, 18:5, 24:6}[bi])
        for it in sched.get(bi, []):
            (issueW if it < NW else issueX)(it)
    g.stamp(7)
    I("s_barrier")
    I("s_cmp_eq_u32 s36, 19")
    I("s_cbranch_scc0 L_ld_end")
    I("s_barrier")
    g.label("L_ld_end")
    g.stamp(8); g.stamp(14, True)
    g.dump(1, 4, opt.dbgwg)
    I("s_endpgm")

    g.label("L_storer")
    I("s_sub_u32 s37, s3, 6")
    I("v_lshrrev_b32 v4, 5, v0")
    I("v_mul_u32_u24 v4, 18432, v4")
    I("v_and_b32 v5, 31, v0")
    I("v_lshl_add_u32 v2, v5, 4, v4")
    I("v_lshlrev_b32 v24, 4, v0")
    I("s_waitcnt lgkmcnt(0)")
    if opt.wtouch:
        I("s_lshl_b32 s41, s33, 9")
        I("s_add_u32 s8, s22, s41")
        I("s_addc_u32 s9, s23, 0")
        I("s_and_b32 s9, s9, 0xffff")
        I("s_sub_u32 s10, 10616832, s41")
        I("s_mov_b32 s11, 0x20000")
        I(f"s_add_u32 s40, s34, {opt.A0}")
        I("s_mul_i32 s40, s40, 589824")
        I("s_mul_i32 s42, s37, 294912")
        I("s_add_u32 s40, s40, s42")
        for rep in range(opt.wtouch):
            I("s_mov_b32 s44, s40")
            for u in range(8):
                I(f"buffer_load_dwordx4 v[{28+4*u}:{31+4*u}], v2, s[8:11], s44 offen {opt.tflags}")
                if u < 7: I("s_add_u32 s44, s44, 36864")
            I(f"s_add_u32 s40, s40, {7*589824}")
    if opt.touch:
        I("s_mov_b32 s4, s20")
        I("s_and_b32 s5, s21, 0xffff")
        I("s_mov_b32 s6, 2359296")
        I("s_mov_b32 s7, 0x20000")
        I("s_mul_i32 s41, s32, 9360")
        I("s_mul_i32 s42, s37, 5120")
        I("s_add_u32 s41, s41, s42")
        I("v_add_u32 v25, 4096, v24")
        for u in range(5):
            I(f"buffer_load_dwordx4 v[{60+4*u}:{63+4*u}], {'v24' if u < 4 else 'v25'}, s[4:7], s41 offen offset:{(u%4)*1024}")
    I("v_lshrrev_b32 v4, 4, v0")
    I("s_lshl_b32 s38, s37, 3")
    I("v_add_u32 v4, s38, v4")
    I("v_and_b32 v5, 15, v0")
    for u in range(2):
        I(f"v_add_u32 v8, {4*u}, v4")
        I("v_xor_b32 v9, v5, v8")
        I("v_lshlrev_b32 v9, 4, v9")
        I(f"v_lshl_add_u32 v{10+u}, v8, 8, v9")
        I("v_mul_u32_u24 v8, 9216, v8")
        I(f"v_lshl_add_u32 v{12+u}, v5, 4, v8")
    I("s_mul_i32 s39, s35, 147456")
    I("s_lshl_b32 s38, s33, 8")
    I("s_add_u32 s39, s39, s38")
    I("s_add_u32 s12, s28, s39")
    I("s_addc_u32 s13, s29, 0")
    I("s_and_b32 s13, s13, 0xffff")
    I("s_mul_i32 s14, s36, 147456")
    I("s_sub_u32 s14, s14, s38")
    I("s_mov_b32 s15, 0x20000")
    nb = len([b for b in barriers(opt) if b <= 19]) + (1 if opt.late else 0)
    I(f"s_mov_b32 s46, {nb}")
    g.label("L_stA")
    I("s_barrier")
    I("s_sub_u32 s46, s46, 1")
    I("s_cmp_lg_u32 s46, 0")
    I("s_cbranch_scc1 L_stA")
    g.stamp(2); g.stamp(13, True)
    I("s_mul_i32 s44, s58, 147456")
    I("s_mul_i32 s47, s36, 147456")
    I("s_mov_b32 s45, 0")
    I("s_waitcnt vmcnt(0)")
    def store_block():
        I("v_add_u32 v14, s45, v10")
        I("v_add_u32 v15, s45, v11")
        I(f"ds_read_b128 v[16:19], v14 offset:{STG_OFF}")
        I(f"ds_read_b128 v[20:23], v15 offset:{STG_OFF}")
        I("s_xor_b32 s45, s45, 4096")
        I("s_waitcnt lgkmcnt(1)")
        if not opt.nostore: I(f"buffer_store_dwordx4 v[16:19], v12, s[12:15], s44 offen {opt.store_flags}")
        I("s_waitcnt lgkmcnt(0)")
        if not opt.nostore: I(f"buffer_store_dwordx4 v[20:23], v13, s[12:15], s44 offen {opt.store_flags}")
        I("s_add_u32 s44, s44, 147456")
        I("s_cmp_eq_u32 s44, s47")
        I("s_cselect_b32 s44, 0, s44")
    if opt.late:
        I("s_sub_u32 s46, s36, 2")
    else:
        I("s_mov_b32 s46, s36")
    g.label("L_stB")
    I("s_barrier")
    store_block()
    I("s_sub_u32 s46, s46, 1")
    I("s_cmp_lg_u32 s46, 0")
    I("s_cbranch_scc1 L_stB")
    if opt.late:
        I("s_barrier")
        store_block()
        store_block()
    g.stamp(3)
    if opt.dbg: I("s_waitcnt vmcnt(0)")
    g.stamp(4); g.stamp(14, True)
    g.wsdump()
    g.dump(2, 6, opt.dbgwg)
    I("s_endpgm")

    g.label("L_compute")
    if opt.prio_compute: I(f"s_setprio {opt.prio_compute}")
    WB = 112; ACC = 96; XR = 64; EP = 60; RAW = 16; LUTV = 96
    V_LB = 48
    V_RA = [2, 3, 4]
    V_X0 = [5, 6, 7]; V_X1 = [8, 9, 10]
    V_ST = 11
    I("v_and_b32 v12, 15, v0")
    I("v_lshrrev_b32 v13, 4, v0")
    I("s_lshl_b32 s39, s3, 7")
    I("v_lshl_add_u32 v15, v12, 3, s39")
    I("v_and_b32 v14, 1, v13")
    I("v_lshlrev_b32 v14, 7, v14")
    I("v_xor_b32 v15, v15, v14")
    I(f"v_lshl_add_u32 v{V_RA[0]}, v13, 12, v15")
    I(f"v_add_u32 v{V_RA[0]}, {RING_OFF}, v{V_RA[0]}")
    I(f"v_add_u32 v{V_RA[1]}, {3*SLOT}, v{V_RA[0]}")
    I(f"v_add_u32 v{V_RA[2]}, {6*SLOT}, v{V_RA[0]}")
    I("v_lshrrev_b32 v14, 1, v12")
    I("v_xor_b32 v14, v14, v13")
    I("v_lshlrev_b32 v14, 4, v14")
    I("v_and_b32 v15, 7, v12")
    I("v_lshl_add_u32 v14, v15, 7, v14")
    I("v_lshrrev_b32 v15, 3, v12")
    I("v_lshl_add_u32 v14, v15, 10, v14")
    I(f"v_add_u32 v{V_X0[0]}, {RING_OFF}, v14")
    I(f"v_xor_b32 v{V_X1[0]}, 64, v{V_X0[0]}")
    for k in (1, 2):
        I(f"v_add_u32 v{V_X0[k]}, {3*k*SLOT}, v{V_X0[0]}")
        I(f"v_add_u32 v{V_X1[k]}, {3*k*SLOT}, v{V_X1[0]}")
    I("s_lshl_b32 s39, s3, 2")
    I("v_add_u32 v14, s39, v13")
    I("v_xor_b32 v14, v14, v12")
    I("v_lshlrev_b32 v14, 4, v14")
    I(f"v_lshl_add_u32 v{V_ST}, v12, 8, v14")
    I("s_lshl_b32 s39, s3, 11")
    I("v_and_b32 v14, 31, v0")
    I(f"v_lshl_add_u32 v{V_LB}, v14, 2, s39")
    I(f"v_mov_b32 v{V_LB+1}, v{V_LB}")
    I("v_lshrrev_b32 v15, 5, v0")
    I(f"v_lshl_add_u32 v50, v15, 10, v{V_LB}")
    I("v_lshlrev_b32 v15, 4, v15")
    I("v_lshlrev_b32 v14, 2, v12")
    I("s_mov_b32 s50, 0x43000000")
    I("s_mov_b32 s51, 0x43000000")
    I("s_mov_b32 s52, 0x05040100")
    I("s_mov_b32 s53, 0x07060302")
    I("s_waitcnt lgkmcnt(0)")
    I("s_mov_b32 s16, s26")
    I("s_and_b32 s17, s27, 0xffff")
    I("s_mov_b32 s18, 9216")
    I("s_mov_b32 s19, 0x20000")
    I("s_mov_b32 s4, s24")
    I("s_and_b32 s5, s25, 0xffff")
    I("s_mov_b32 s6, 32")
    I("s_mov_b32 s7, 0x20000")
    I("s_lshl_b32 s38, s33, 8")
    I("s_lshl_b32 s39, s3, 6")
    I("s_add_u32 s38, s38, s39")
    I("buffer_load_dword v51, v14, s[16:19], s38 offen")
    I("buffer_load_dwordx4 v[52:55], v15, s[4:7], 0 offen")
    I("s_waitcnt vmcnt(0)")
    I("v_lshlrev_b32 v56, 16, v51")
    I("v_and_b32 v57, 0xffff0000, v51")
    for m in range(4):
        I(f"v_lshlrev_b32 v58, 16, v{52+m}")
        I(f"v_and_b32 v59, 0xffff0000, v{52+m}")
        for b in range(2):
            I(f"v_mul_f32 v60, v{58+b}, v56")
            I(f"v_mul_f32 v61, v{58+b}, v57")
            I(f"v_cvt_pk_bf16_f32 v{62+b}, v60, v61")
            I(f"ds_write_b32 v50, v{62+b} offset:{STG_OFF + (2*m+b)*128}")
    I("s_waitcnt lgkmcnt(0)")
    g.stamp(1)

    def slot_base(it):
        sl = it % NSLOT
        return sl // 3, (sl % 3) * SLOT
    def raw_reads(i):
        rb = RAW + (i % 2) * 16
        k, off = slot_base(i)
        for e in range(8):
            g.ds(f"ds_read_b64 {vr(rb + 2*e, 2)}, v{V_RA[k]} offset:{off + e*512}", R(rb + 2*e, 2))
    def lut_addr(i, e):
        if opt.nolut: return
        rb = RAW + (i % 2) * 16
        a = rb + 2*e
        g.need(R(a, 2))
        if opt.addr == "pk":
            I(f"v_pk_fma_f32 {vr(a,2)}, {vr(a,2)}, s[50:51], {vr(V_LB,2)}")
        else:
            for c in range(2):
                I(f"v_lshl_add_u32 v{a+c}, v{a+c}, 7, v{V_LB}")
    def lut_read(i, e):
        if opt.nolut: return
        rb = RAW + (i % 2) * 16
        a = rb + 2*e
        for c in range(2):
            if opt.comb == "perm":
                g.ds(f"ds_read_b32 v{LUTV+2*e+c}, v{a+c} offset:{STG_OFF}", [LUTV + 2*e + c])
            else:
                d = WB + (i*2+c)*4 + e//2
                op = "ds_read_u16_d16" if e % 2 == 0 else "ds_read_u16_d16_hi"
                g.ds(f"{op} v{d}, v{a+c} offset:{STG_OFF + 2*c}", [d])
    def lut(i, e):
        lut_addr(i, e); lut_read(i, e)
    def comb(i, t):
        if opt.comb != "perm" or opt.nolut: return
        for c in range(2):
            ev = LUTV + 2*(2*t) + c; od = LUTV + 2*(2*t+1) + c
            g.need([ev, od])
            I(f"v_perm_b32 v{WB + (i*2+c)*4 + t}, v{od}, v{ev}, s{52+c}")
    def xread(gs):
        t, s = divmod(gs, 18)
        k, off = slot_base(NW + t)
        a = (V_X0 if (s & 1) == 0 else V_X1)[k]
        slot = gs % opt.RING
        g.ds(f"ds_read_b128 {vr(XR + slot*4, 4)}, v{a} offset:{off + (s >> 1) * 2048}", R(XR + slot*4, 4))
    def raw_read1(i, e):
        rb = RAW + (i % 2) * 16
        k, off = slot_base(i)
        g.ds(f"ds_read_b64 {vr(rb + 2*e, 2)}, v{V_RA[k]} offset:{off + e*512}", R(rb + 2*e, 2))
    def raw_read2(i, e):
        rb = RAW + (i % 2) * 16
        k, off = slot_base(i)
        o = off // 512 + e
        g.ds(f"ds_read2st64_b64 {vr(rb + 2*e, 4)}, v{V_RA[k]} offset0:{o} offset1:{o+1}", R(rb + 2*e, 4))
    if opt.lutwaves < 4:
        I(f"s_cmp_ge_u32 s3, {opt.lutwaves}")
        I("s_cbranch_scc0 L_p1go")
        for _ in range(19): I("s_barrier")
        I("s_branch L_p2go")
        g.label("L_p1go")
    bset = set(barriers(opt))
    I("s_barrier")
    g.stamp(2)
    raw_reads(0)
    for i in range(1, NW + 1):
        if i % opt.PT == 0:
            if opt.PT > 1 and i < NW + 1:
                g.need(R(RAW + ((i-1) % 2) * 16, 16))
            I("s_barrier")
            if i in (6, 12, 18): g.stamp({6:4, 12:5, 18:6}[i])
        if i == 1: g.stamp(3)
        lut_addr(i-1, 0); lut_addr(i-1, 1)
        if i >= 2: comb(i-2, 2)
        if i >= 2: comb(i-2, 3)
        for e in range(8):
            if e + 2 < 8: lut_addr(i-1, e+2)
            lut_read(i-1, e)
            if i < NW: raw_read1(i, e)
            elif e < opt.D: xread(e)
            if e == 5: comb(i-1, 0)
            if e == 7: comb(i-1, 1)
    comb(NW-1, 2); comb(NW-1, 3)
    if opt.comb != "perm":
        g.need(R(WB + (NW-1)*8, 8))
    if opt.lutwaves < 4:
        g.wait_lgkm(0)
        g.label("L_p2go")
    def epi_cvt(par, r):
        if opt.nocvt: return
        a0 = ACC + par*8; a1 = a0 + 4
        I(f"v_cvt_pk_bf16_f32 v{EP+r}, v{a0+r}, v{a1+r}")
    def epi_write(par, part=None):
        if opt.nowrite: return
        if part is None:
            g.ds(f"ds_write_b128 v{V_ST}, {vr(EP,4)} offset:{STG_OFF + par*4096}", [])
        else:
            g.ds(f"ds_write_b64 v{V_ST}, {vr(EP+2*part,2)} offset:{STG_OFF + par*4096 + 8*part}", [])
    def wait_epi():
        idx = -1
        for k, d in enumerate(g.lgkm):
            if len(d) == 0: idx = k
        if idx >= 0: g.wait_lgkm(len(g.lgkm) - 1 - idx)
    def item(t, last):
        par = t % 2
        sb = 17 - opt.D
        for s in range(18):
            gs = t*18 + s
            xr = XR + (gs % opt.RING) * 4
            if opt.nowait:
                pass
            elif opt.wait2 and s % 2 == 0 and s + 1 < 18:
                g.need(R(xr, 4) + R(XR + ((gs+1) % opt.RING) * 4, 4))
            else:
                g.need(R(xr, 4))
            def mf(c):
                acc = ACC + par*8 + c*4
                src = "0" if s == 0 else vr(acc, 4)
                I(f"v_mfma_f32_16x16x32_bf16 {vr(acc,4)}, {vr(WB + (s*2+c)*4, 4)}, {vr(xr,4)}, {src}")
            mf(0)
            ns = s + opt.D
            if (ns < 18 or not last) and not opt.noread:
                xread(gs + opt.D)
            e0 = (sb - 3) if opt.late else opt.epi0
            if t > 0 and not opt.noepi:
                if e0 <= s < e0 + 4: epi_cvt(1 - par, s - e0)
            mf(1)
            if t > 0 and not opt.noepi:
                w0 = (sb + 1) if opt.late else e0 + 4
                if opt.wb64:
                    if s == w0: epi_write(1 - par, 0)
                    if s == w0 + 2: epi_write(1 - par, 1)
                elif s == w0: epi_write(1 - par)
            if s == sb:
                wait_epi()
                I("s_barrier")
                if t in (0, 8, 16): g.stamp({0:8, 8:9, 16:10}[t])
    g.stamp(7)
    for t in range(17): item(t, False)
    item(17, False)
    st = list(g.lgkm)
    I("s_cmp_eq_u32 s36, 19")
    I("s_cbranch_scc0 L_tail18")
    item(18, True)
    I("s_nop 7")
    for r in range(4): epi_cvt(0, r)
    epi_write(0)
    I("s_waitcnt lgkmcnt(0)")
    I("s_barrier")
    g.stamp(11); g.stamp(14, True)
    g.dump(0, 0, opt.dbgwg)
    I("s_endpgm")
    g.label("L_tail18")
    g.lgkm = st
    I("s_nop 7")
    for r in range(4): epi_cvt(1, r)
    epi_write(1)
    I("s_waitcnt lgkmcnt(0)")
    I("s_barrier")
    g.stamp(11); g.stamp(14, True)
    g.dump(0, 0, opt.dbgwg)
    g.label("L_exit")
    I("s_endpgm")
    g.raw('.section .rodata,"a"')
    g.raw(".p2align 6")
    g.raw(f".amdhsa_kernel {NAME}_kernel")
    g.raw("  .amdhsa_next_free_vgpr 256")
    g.raw(f"  .amdhsa_next_free_sgpr {96 if opt.dbg else 64}")
    g.raw("  .amdhsa_accum_offset 256")
    g.raw("  .amdhsa_group_segment_fixed_size 0")
    g.raw("  .amdhsa_kernarg_size 56")
    g.raw("  .amdhsa_user_sgpr_count 2")
    g.raw("  .amdhsa_user_sgpr_kernarg_segment_ptr 1")
    g.raw("  .amdhsa_system_sgpr_workgroup_id_x 1")
    g.raw("  .amdhsa_float_denorm_mode_32 3")
    g.raw(".end_amdhsa_kernel")
    return g.text()

if __name__ == "__main__":
    opt = Opt()
    for a in sys.argv[2:]:
        k, v = a.split("=")
        cur = getattr(opt, k)
        setattr(opt, k, type(cur)(v) if not isinstance(cur, bool) else v == "1")
    open(sys.argv[1], "w").write(build(opt))
```

```python
import sys
NAME = "standalone__normalfloat_lut_codebook_lookup__prompt"

class Opt:
    store_flags = "sc1"
    D = 6
    RING = 9
    A0 = 4
    AHEAD = 6
    prio_compute = 0
    prio_helper = 0
    addr = "pk"
    comb = "perm"
    rot = False
    wtouch = 0
    tflags = ""
    PT = 1
    wait2 = True
    dbg = False
    dbgwg = 0
    epi0 = 2
    xflags = ""
    wflags = ""
    xrot = False
    touch = True
    noepi = False
    dummy = 0
    lutwaves = 4
    p1 = 1
    raw2 = False
    nolut = False
    nowdma = False
    nocvt = False
    nowrite = False
    epi = "a"
    late = True
    wb64 = True
    noread = False
    nodma = False
    nostore = False
    nowait = False
    R = 0
    hflags = "sc1"
    he0 = 4
    hrd = 0

STG_OFF = 0
RING_OFF = 8192
SLOT = 18432
NSLOT = 8
LDS_BYTES = RING_OFF + NSLOT * SLOT
NW = 18
NX = 19
def geometry(opt):
    global SLOT, NSLOT, LDS_BYTES, NX
    SLOT = 16384 + max(2, opt.R) * 1024
    NSLOT = min(8, (163840 - RING_OFF) // SLOT)
    LDS_BYTES = RING_OFF + NSLOT * SLOT
    NX = 19 - opt.R

class Gen:
    def __init__(self):
        self.lines = []
        self.lgkm = []
        self.dbg = False
    def raw(self, s): self.lines.append(s)
    def label(self, l): self.lines.append(l + ":")
    def ins(self, s): self.lines.append("    " + s)
    def ds(self, s, dests=()):
        if len(self.lgkm) >= 15:
            self.wait_lgkm(11)
        self.ins(s)
        self.lgkm.append(set(dests))
    def wait_lgkm(self, n):
        if len(self.lgkm) > n:
            self.ins(f"s_waitcnt lgkmcnt({n})")
            self.lgkm = self.lgkm[len(self.lgkm) - n:] if n > 0 else []
    def need(self, regs):
        regs = set(regs)
        last = -1
        for i, d in enumerate(self.lgkm):
            if d & regs: last = i
        if last >= 0: self.wait_lgkm(len(self.lgkm) - 1 - last)
    def stamp(self, k, real=False):
        if self.dbg:
            self.ins(f"s_{'memrealtime' if real else 'memtime'} s[{64+2*k}:{65+2*k}]")
    def dump(self, role, wavecond, dbgwg):
        if not self.dbg: return
        lab = f"L_nodump{role}_{len(self.lines)}"
        self.ins("s_waitcnt lgkmcnt(0) vmcnt(0)")
        self.ins(f"s_cmp_eq_u32 s2, {dbgwg}")
        self.ins(f"s_cbranch_scc0 {lab}")
        self.ins(f"s_cmp_eq_u32 s3, {wavecond}")
        self.ins(f"s_cbranch_scc0 {lab}")
        self.ins("s_load_dwordx2 s[60:61], s[0:1], 40")
        self.ins("s_waitcnt lgkmcnt(0)")
        self.ins("s_and_b32 s61, s61, 0xffff")
        self.ins("s_mov_b32 s62, 256")
        self.ins("s_mov_b32 s63, 0x20000")
        self.ins("v_mov_b32 v20, 0")
        for k in range(16):
            self.ins(f"v_writelane_b32 v20, s{64+2*k}, {k}")
        self.ins("v_mbcnt_lo_u32_b32 v21, -1, 0")
        self.ins("v_mbcnt_hi_u32_b32 v21, -1, v21")
        self.ins("v_cmp_gt_u32 vcc, 16, v21")
        self.ins(f"v_lshlrev_b32 v21, 2, v21")
        self.ins(f"v_add_u32 v21, {role*64}, v21")
        self.ins("s_and_saveexec_b64 s[58:59], vcc")
        self.ins("buffer_store_dword v20, v21, s[60:63], 0 offen")
        self.ins("s_waitcnt vmcnt(0)")
        self.label(lab)
    def wsdump(self):
        if not self.dbg: return
        lab = f"L_nows_{len(self.lines)}"
        self.ins("s_waitcnt lgkmcnt(0) vmcnt(0)")
        self.ins("s_cmp_eq_u32 s3, 6")
        self.ins(f"s_cbranch_scc0 {lab}")
        self.ins("s_load_dwordx2 s[60:61], s[0:1], 48")
        self.ins("s_waitcnt lgkmcnt(0)")
        self.ins("s_and_b32 s61, s61, 0xffff")
        self.ins("s_mov_b32 s62, 65536")
        self.ins("s_mov_b32 s63, 0x20000")
        self.ins("v_mov_b32 v20, 0")
        self.ins("v_writelane_b32 v20, s94, 0")
        self.ins("v_writelane_b32 v20, s90, 1")
        self.ins("v_writelane_b32 v20, s92, 2")
        self.ins("v_writelane_b32 v20, s2, 3")
        self.ins("v_mbcnt_lo_u32_b32 v21, -1, 0")
        self.ins("v_mbcnt_hi_u32_b32 v21, -1, v21")
        self.ins("v_cmp_gt_u32 vcc, 4, v21")
        self.ins("v_lshlrev_b32 v21, 2, v21")
        self.ins("s_lshl_b32 s59, s2, 4")
        self.ins("s_and_saveexec_b64 s[56:57], vcc")
        self.ins("buffer_store_dword v20, v21, s[60:63], s59 offen")
        self.ins("s_waitcnt vmcnt(0)")
        self.ins("s_mov_b64 exec, s[56:57]")
        self.label(lab)
    def text(self): return "\n".join(self.lines) + "\n"

def R(base, n): return list(range(base, base + n))
def vr(base, n): return f"v[{base}:{base+n-1}]" if n > 1 else f"v{base}"

def barriers(opt):
    l = list(range(opt.PT - 1, NW, opt.PT))
    assert l[-1] == NW - 1
    return l + list(range(NW, NW + NX))

def issue_schedule(opt):
    total = NW + NX
    sched = {-1: list(range(opt.A0))}
    nxt = opt.A0
    def free(n, b):
        p = n - NSLOT
        if p < 0: return True
        if p < NW:
            if opt.PT > 1: return p <= b - 4
            return p <= b - (3 if opt.R else 2)
        return p <= b - 2
    for b in barriers(opt):
        lst = []
        if b < NW:
            n = opt.PT if b < NW - 4 else 2
        else:
            n = 2 if b <= NW + 1 else 1
        while n > 0 and nxt < total and nxt <= b + opt.AHEAD and free(nxt, b):
            lst.append(nxt); nxt += 1; n -= 1
        sched[b] = lst
    assert nxt == total, (nxt, total)
    done = set(sched[-1])
    for b in barriers(opt):
        assert all(i in done for i in range(b + 1)), (b, sched)
        done |= set(sched[b])
    return sched

def build(opt):
    geometry(opt)
    g = Gen(); g.dbg = opt.dbg
    I = g.ins
    g.raw(f"; @launch grid=(252,1,1) block=(512,1,1) lds={LDS_BYTES}")
    g.raw('.amdgcn_target "amdgcn-amd-amdhsa--gfx950"')
    g.raw(".text")
    g.raw(f".globl {NAME}_kernel")
    g.raw(".p2align 8")
    g.raw(f".type {NAME}_kernel,@function")
    g.label(f"{NAME}_kernel")
    I("s_cmp_ge_u32 s2, 252")
    I("s_cbranch_scc1 L_exit")
    g.stamp(0); g.stamp(15, True)
    I("s_load_dwordx4 s[20:23], s[0:1], 0")
    I("s_load_dwordx4 s[24:27], s[0:1], 16")
    I("s_load_dwordx2 s[28:29], s[0:1], 32")
    I("v_lshrrev_b32 v1, 6, v0")
    I("v_and_b32 v0, 63, v0")
    I("s_and_b32 s30, s2, 7")
    I("s_lshr_b32 s31, s2, 3")
    I("v_readfirstlane_b32 s3, v1")
    I("s_lshl_b32 s32, s30, 5")
    I("s_sub_i32 s33, s30, 4")
    I("s_max_i32 s33, s33, 0")
    I("s_sub_u32 s32, s32, s33")
    I("s_add_u32 s32, s32, s31")
    I("s_mul_i32 s33, s32, 9363")
    I("s_lshr_b32 s33, s33, 16")
    I("s_mul_i32 s34, s33, 7")
    I("s_sub_u32 s34, s32, s34")
    I("s_mul_i32 s35, s34, 18")
    I("s_min_u32 s36, s34, 2")
    I("s_add_u32 s35, s35, s36")
    I("s_cmp_lt_u32 s34, 2")
    I("s_cselect_b32 s36, 19, 18")
    if opt.xrot:
        I("s_mov_b32 s38, 3641")
        I("s_cselect_b32 s38, 3450, s38")
        I("s_lshl_b32 s39, s33, 2")
        I("s_mul_i32 s38, s38, s39")
        I("s_lshr_b32 s38, s38, 16")
        I("s_mul_i32 s38, s38, s36")
        I("s_sub_u32 s58, s39, s38")
    else:
        I("s_mov_b32 s58, 0")
    I("s_cmp_ge_u32 s3, 4")
    I("s_cbranch_scc0 L_compute")

    g.label("L_helper")
    if opt.prio_helper: I(f"s_setprio {opt.prio_helper}")
    I("s_cmp_ge_u32 s3, 6")
    I("s_cbranch_scc1 L_storer")
    I("s_sub_u32 s37, s3, 4")
    I("v_lshrrev_b32 v4, 5, v0")
    I("v_mul_u32_u24 v4, 18432, v4")
    I("v_and_b32 v5, 31, v0")
    I("v_lshl_add_u32 v2, v5, 4, v4")
    I("v_xor_b32 v5, 8, v5")
    I("v_lshl_add_u32 v3, v5, 4, v4")
    I("s_mul_i32 s40, s37, 294912")
    I("s_lshl_b32 s38, s37, 13")
    I("s_waitcnt lgkmcnt(0)")
    I("s_lshl_b32 s41, s33, 9")
    I("s_add_u32 s8, s22, s41")
    I("s_addc_u32 s9, s23, 0")
    I("s_and_b32 s9, s9, 0xffff")
    I("s_sub_u32 s10, 10616832, s41")
    I("s_mov_b32 s11, 0x20000")
    I("s_mul_i32 s41, s35, 18432")
    I("s_add_u32 s4, s20, s41")
    I("s_addc_u32 s5, s21, 0")
    I("s_and_b32 s5, s5, 0xffff")
    I("s_mul_i32 s6, s36, 18432")
    I("s_mov_b32 s7, 0x20000")
    if opt.R:
        I("v_lshrrev_b32 v26, 2, v0")
        I("v_lshrrev_b32 v27, 4, v0")
        I("v_sub_u32 v27, 4, v27")
        I("v_xor_b32 v27, v27, v0")
        I("v_and_b32 v27, 3, v27")
        I("v_mul_u32_u24 v26, 1152, v26")
        I("v_lshl_add_u32 v26, v27, 4, v26")
        I("s_mul_i32 s59, s37, 18432")
        I("s_lshl_b32 s60, s37, 10")
        I("s_mov_b32 s62, -1")
        I("s_mov_b32 s63, -1")
        if opt.R == 3:
            I("s_cmp_eq_u32 s37, 0")
            I("s_cselect_b32 s62, -1, 0")
            I("s_cselect_b32 s63, 0, -1")
    assert opt.R == 0 and not opt.rot
    def next_slot():
        I(f"s_add_u32 s61, s61, {SLOT}")
        I(f"s_cmp_eq_u32 s61, {NSLOT*SLOT}")
        I("s_cselect_b32 s61, 0, s61")
    def issueW():
        I("s_add_u32 m0, s38, s61")
        I("s_mov_b32 s44, s40")
        for u in range(8):
            v = "v2" if u < 4 else "v3"
            I(f"buffer_load_dwordx4 {v}, s[8:11], s44 offen {opt.wflags} lds")
            if u < 7:
                I("s_add_u32 m0, m0, 1024")
                I("s_add_u32 s44, s44, 36864")
        I("s_add_u32 s40, s40, 589824")
        next_slot()
    def issueX():
        I("s_add_u32 m0, s39, s61")
        for c in range(9):
            I(f"s_add_u32 s44, s{48+c}, s57")
            I(f"buffer_load_dwordx4 v6, s[4:7], s44 offen {opt.xflags} lds")
            if c < 8:
                I("s_add_u32 m0, m0, 2048")
        I("s_add_u32 s57, s57, 18432")
        I("s_cmp_eq_u32 s57, s6")
        I("s_cselect_b32 s57, 0, s57")
        next_slot()
    assert opt.A0 == 4 and opt.PT in (1, 2)
    I(f"s_add_u32 s38, s38, {RING_OFF}")
    I("s_mov_b32 s61, 0")
    I("s_mov_b32 s46, 4")
    g.label("L_ldA")
    issueW()
    I("s_sub_u32 s46, s46, 1")
    I("s_cmp_lg_u32 s46, 0")
    I("s_cbranch_scc1 L_ldA")
    g.stamp(1)
    I("v_lshrrev_b32 v7, 3, v0")
    I("v_lshrrev_b32 v8, 1, v7")
    I("s_lshl_b32 s42, s37, 2")
    I("v_add_u32 v8, s42, v8")
    I("v_and_b32 v9, 7, v0")
    I("v_xor_b32 v8, v8, v9")
    I("v_mul_u32_u24 v7, 1152, v7")
    I("v_lshl_add_u32 v6, v8, 4, v7")
    I("s_mul_i32 s42, s37, 9216")
    for c in range(9):
        I(f"s_add_u32 s{48+c}, s42, {c*128}")
    I("s_lshl_b32 s39, s37, 10")
    I(f"s_add_u32 s39, s39, {RING_OFF}")
    I("s_mov_b32 s57, 0")
    I(f"s_mov_b32 s46, {14 // opt.PT}")
    g.label("L_ldW")
    I(f"s_waitcnt vmcnt({8 * (4 - opt.PT)})")
    I("s_barrier")
    for _ in range(opt.PT): issueW()
    I("s_sub_u32 s46, s46, 1")
    I("s_cmp_lg_u32 s46, 0")
    I("s_cbranch_scc1 L_ldW")
    g.stamp(3)
    if opt.PT == 2:
        I("s_mov_b32 s46, 2")
        g.label("L_ldX2")
        I("s_waitcnt vmcnt(16)")
        I("s_barrier")
        issueX(); issueX()
        I("s_sub_u32 s46, s46, 1")
        I("s_cmp_lg_u32 s46, 0")
        I("s_cbranch_scc1 L_ldX2")
        I(f"s_mov_b32 s46, {NX - 4}")
    else:
        I(f"s_mov_b32 s46, {NX}")
    g.label("L_ldX")
    I("s_waitcnt vmcnt(24)")
    I("s_barrier")
    issueX()
    I("s_sub_u32 s46, s46, 1")
    I("s_cmp_lg_u32 s46, 0")
    I("s_cbranch_scc1 L_ldX")
    g.stamp(5)
    for n in (27, 18, 9, 0):
        I(f"s_waitcnt vmcnt({n})")
        I("s_barrier")
    g.stamp(7)
    I("s_barrier")
    I("s_cmp_eq_u32 s36, 19")
    I("s_cbranch_scc0 L_ld_end")
    I("s_barrier")
    g.label("L_ld_end")
    g.stamp(8); g.stamp(14, True)
    g.dump(1, 4, opt.dbgwg)
    I("s_endpgm")

    g.label("L_storer")
    I("s_sub_u32 s37, s3, 6")
    I("v_lshrrev_b32 v4, 5, v0")
    I("v_mul_u32_u24 v4, 18432, v4")
    I("v_and_b32 v5, 31, v0")
    I("v_lshl_add_u32 v2, v5, 4, v4")
    I("v_lshlrev_b32 v24, 4, v0")
    I("s_waitcnt lgkmcnt(0)")
    if opt.wtouch:
        I("s_lshl_b32 s41, s33, 9")
        I("s_add_u32 s8, s22, s41")
        I("s_addc_u32 s9, s23, 0")
        I("s_and_b32 s9, s9, 0xffff")
        I("s_sub_u32 s10, 10616832, s41")
        I("s_mov_b32 s11, 0x20000")
        I(f"s_add_u32 s40, s34, {opt.A0}")
        I("s_mul_i32 s40, s40, 589824")
        I("s_mul_i32 s42, s37, 294912")
        I("s_add_u32 s40, s40, s42")
        for rep in range(opt.wtouch):
            I("s_mov_b32 s44, s40")
            for u in range(8):
                I(f"buffer_load_dwordx4 v[{28+4*u}:{31+4*u}], v2, s[8:11], s44 offen {opt.tflags}")
                if u < 7: I("s_add_u32 s44, s44, 36864")
            I(f"s_add_u32 s40, s40, {7*589824}")
    if opt.touch:
        I("s_mov_b32 s4, s20")
        I("s_and_b32 s5, s21, 0xffff")
        I("s_mov_b32 s6, 2359296")
        I("s_mov_b32 s7, 0x20000")
        I("s_mul_i32 s41, s32, 9360")
        I("s_mul_i32 s42, s37, 5120")
        I("s_add_u32 s41, s41, s42")
        I("v_add_u32 v25, 4096, v24")
        for u in range(5):
            I(f"buffer_load_dwordx4 v[{60+4*u}:{63+4*u}], {'v24' if u < 4 else 'v25'}, s[4:7], s41 offen offset:{(u%4)*1024}")
    I("v_lshrrev_b32 v4, 4, v0")
    I("s_lshl_b32 s38, s37, 3")
    I("v_add_u32 v4, s38, v4")
    I("v_and_b32 v5, 15, v0")
    for u in range(2):
        I(f"v_add_u32 v8, {4*u}, v4")
        I("v_xor_b32 v9, v5, v8")
        I("v_lshlrev_b32 v9, 4, v9")
        I(f"v_lshl_add_u32 v{10+u}, v8, 8, v9")
        I("v_mul_u32_u24 v8, 9216, v8")
        I(f"v_lshl_add_u32 v{12+u}, v5, 4, v8")
    I("s_mul_i32 s39, s35, 147456")
    I("s_lshl_b32 s38, s33, 8")
    I("s_add_u32 s39, s39, s38")
    I("s_add_u32 s12, s28, s39")
    I("s_addc_u32 s13, s29, 0")
    I("s_and_b32 s13, s13, 0xffff")
    I("s_mul_i32 s14, s36, 147456")
    I("s_sub_u32 s14, s14, s38")
    I("s_mov_b32 s15, 0x20000")
    nb = len([b for b in barriers(opt) if b <= 19]) + (1 if opt.late else 0)
    I(f"s_mov_b32 s46, {nb}")
    g.label("L_stA")
    I("s_barrier")
    I("s_sub_u32 s46, s46, 1")
    I("s_cmp_lg_u32 s46, 0")
    I("s_cbranch_scc1 L_stA")
    g.stamp(2); g.stamp(13, True)
    I(f"s_mov_b32 s44, {opt.R*147456}")
    I("s_mul_i32 s47, s36, 147456")
    I("s_mov_b32 s45, 0")
    I("s_waitcnt vmcnt(0)")
    def store_block():
        I("v_add_u32 v14, s45, v10")
        I("v_add_u32 v15, s45, v11")
        I(f"ds_read_b128 v[16:19], v14 offset:{STG_OFF}")
        I(f"ds_read_b128 v[20:23], v15 offset:{STG_OFF}")
        I("s_xor_b32 s45, s45, 4096")
        I("s_waitcnt lgkmcnt(1)")
        if not opt.nostore: I(f"buffer_store_dwordx4 v[16:19], v12, s[12:15], s44 offen {opt.store_flags}")
        I("s_waitcnt lgkmcnt(0)")
        if not opt.nostore: I(f"buffer_store_dwordx4 v[20:23], v13, s[12:15], s44 offen {opt.store_flags}")
        I("s_add_u32 s44, s44, 147456")
        I("s_cmp_eq_u32 s44, s47")
        I("s_cselect_b32 s44, 0, s44")
    if opt.late:
        I(f"s_sub_u32 s46, s36, {2 + opt.R}")
    else:
        I(f"s_sub_u32 s46, s36, {opt.R}")
    g.label("L_stB")
    I("s_barrier")
    store_block()
    I("s_sub_u32 s46, s46, 1")
    I("s_cmp_lg_u32 s46, 0")
    I("s_cbranch_scc1 L_stB")
    if opt.late:
        I("s_barrier")
        store_block()
        store_block()
    g.stamp(3)
    if opt.dbg: I("s_waitcnt vmcnt(0)")
    g.stamp(4); g.stamp(14, True)
    g.wsdump()
    g.dump(2, 6, opt.dbgwg)
    I("s_endpgm")

    g.label("L_compute")
    if opt.prio_compute: I(f"s_setprio {opt.prio_compute}")
    WB = 112; ACC = 96; XR = 12; EP = 60; RAW = 16; LUTV = 96
    HA = 64; HX = [12, 52, 56, 60]; V_H = [50, 51, 0]; V_HS = 1
    V_LB = 48
    V_RA = [2, 3, 4]
    V_X0 = [5, 6, 7]; V_X1 = [8, 9, 10]
    V_ST = 11
    I("v_and_b32 v12, 15, v0")
    I("v_lshrrev_b32 v13, 4, v0")
    I("s_lshl_b32 s39, s3, 7")
    I("v_lshl_add_u32 v15, v12, 3, s39")
    I("v_and_b32 v14, 1, v13")
    I("v_lshlrev_b32 v14, 7, v14")
    I("v_xor_b32 v15, v15, v14")
    I(f"v_lshl_add_u32 v{V_RA[0]}, v13, 12, v15")
    I(f"v_add_u32 v{V_RA[0]}, {RING_OFF}, v{V_RA[0]}")
    I(f"v_add_u32 v{V_RA[1]}, {3*SLOT}, v{V_RA[0]}")
    I(f"v_add_u32 v{V_RA[2]}, {6*SLOT}, v{V_RA[0]}")
    I("v_lshrrev_b32 v14, 1, v12")
    I("v_xor_b32 v14, v14, v13")
    I("v_lshlrev_b32 v14, 4, v14")
    I("v_and_b32 v15, 7, v12")
    I("v_lshl_add_u32 v14, v15, 7, v14")
    I("v_lshrrev_b32 v15, 3, v12")
    I("v_lshl_add_u32 v14, v15, 10, v14")
    I(f"v_add_u32 v5, {RING_OFF + (NW % NSLOT) * SLOT}, v14")
    I("v_xor_b32 v6, 64, v5")
    I(f"v_add_u32 v8, {SLOT}, v5")
    I(f"v_add_u32 v9, {SLOT}, v6")
    I("s_lshl_b32 s39, s3, 2")
    I("v_add_u32 v14, s39, v13")
    I("v_xor_b32 v14, v14, v12")
    I("v_lshlrev_b32 v14, 4, v14")
    I(f"v_lshl_add_u32 v{V_ST}, v12, 8, v14")
    I("s_lshl_b32 s39, s3, 11")
    I("v_and_b32 v14, 31, v0")
    I(f"v_lshl_add_u32 v{V_LB}, v14, 2, s39")
    I(f"v_mov_b32 v{V_LB+1}, v{V_LB}")
    I("v_lshrrev_b32 v15, 5, v0")
    I(f"v_lshl_add_u32 v50, v15, 10, v{V_LB}")
    I("v_lshlrev_b32 v15, 4, v15")
    I("v_lshlrev_b32 v14, 2, v12")
    I("s_mov_b32 s50, 0x43000000")
    I("s_mov_b32 s51, 0x43000000")
    I("s_mov_b32 s52, 0x05040100")
    I("s_mov_b32 s53, 0x07060302")
    I("s_waitcnt lgkmcnt(0)")
    I("s_mov_b32 s16, s26")
    I("s_and_b32 s17, s27, 0xffff")
    I("s_mov_b32 s18, 9216")
    I("s_mov_b32 s19, 0x20000")
    I("s_mov_b32 s4, s24")
    I("s_and_b32 s5, s25, 0xffff")
    I("s_mov_b32 s6, 32")
    I("s_mov_b32 s7, 0x20000")
    I("s_lshl_b32 s38, s33, 8")
    I("s_lshl_b32 s39, s3, 6")
    I("s_add_u32 s38, s38, s39")
    I("buffer_load_dword v51, v14, s[16:19], s38 offen")
    I("buffer_load_dwordx4 v[52:55], v15, s[4:7], 0 offen")
    I("s_waitcnt vmcnt(0)")
    I("v_lshlrev_b32 v56, 16, v51")
    I("v_and_b32 v57, 0xffff0000, v51")
    for m in range(4):
        I(f"v_lshlrev_b32 v58, 16, v{52+m}")
        I(f"v_and_b32 v59, 0xffff0000, v{52+m}")
        for b in range(2):
            I(f"v_mul_f32 v60, v{58+b}, v56")
            I(f"v_mul_f32 v61, v{58+b}, v57")
            I(f"v_cvt_pk_bf16_f32 v{62+b}, v60, v61")
            I(f"ds_write_b32 v50, v{62+b} offset:{STG_OFF + (2*m+b)*128}")
    if opt.R:
        I("v_lshrrev_b32 v14, 2, v12")
        I("v_sub_u32 v14, 4, v14")
        I("v_xor_b32 v14, v14, v13")
        I("v_and_b32 v14, 3, v14")
        I("v_lshlrev_b32 v14, 4, v14")
        I("v_lshl_add_u32 v14, v12, 6, v14")
        I(f"v_add_u32 v{V_H[0]}, {RING_OFF + 16384}, v14")
        I(f"v_add_u32 v{V_H[1]}, {3*SLOT}, v{V_H[0]}")
        I(f"v_add_u32 v{V_H[2]}, {6*SLOT}, v{V_H[0]}")
        I("v_mul_u32_u24 v14, 9216, v12")
        I("v_lshl_add_u32 v14, v13, 4, v14")
        I("s_lshl_b32 s39, s3, 6")
        I(f"v_add_u32 v{V_HS}, s39, v14")
        I("s_mul_i32 s39, s35, 147456")
        I("s_lshl_b32 s38, s33, 8")
        I("s_add_u32 s39, s39, s38")
        I("s_add_u32 s12, s28, s39")
        I("s_addc_u32 s13, s29, 0")
        I("s_and_b32 s13, s13, 0xffff")
        I("s_mul_i32 s14, s36, 147456")
        I("s_sub_u32 s14, s14, s38")
        I("s_mov_b32 s15, 0x20000")
    I("s_waitcnt lgkmcnt(0)")
    g.stamp(1)

    def hx_reads(st):
        k, off = slot_base(st)
        for r in range(opt.R):
            g.ds(f"ds_read_b128 {vr(HX[r], 4)}, v{V_H[k]} offset:{off + r*1024}", R(HX[r], 4))
    def hx_mfma(st, r, c):
        g.need(R(HX[r], 4))
        acc = HA + r*8 + c*4
        src = "0" if st == 0 else vr(acc, 4)
        I(f"v_mfma_f32_16x16x32_bf16 {vr(acc,4)}, {vr(WB + (st*2+c)*4, 4)}, {vr(HX[r],4)}, {src}")
    def slot_base(it):
        sl = it % NSLOT
        return sl // 3, (sl % 3) * SLOT
    def raw_reads(i):
        rb = RAW + (i % 2) * 16
        k, off = slot_base(i)
        for e in range(8):
            g.ds(f"ds_read_b64 {vr(rb + 2*e, 2)}, v{V_RA[k]} offset:{off + e*512}", R(rb + 2*e, 2))
    def lut_addr(i, e):
        if opt.nolut: return
        rb = RAW + (i % 2) * 16
        a = rb + 2*e
        g.need(R(a, 2))
        if opt.addr == "pk":
            I(f"v_pk_fma_f32 {vr(a,2)}, {vr(a,2)}, s[50:51], {vr(V_LB,2)}")
        else:
            for c in range(2):
                I(f"v_lshl_add_u32 v{a+c}, v{a+c}, 7, v{V_LB}")
    def lut_read(i, e):
        if opt.nolut: return
        rb = RAW + (i % 2) * 16
        a = rb + 2*e
        for c in range(2):
            if opt.comb == "perm":
                g.ds(f"ds_read_b32 v{LUTV+2*e+c}, v{a+c} offset:{STG_OFF}", [LUTV + 2*e + c])
            else:
                d = WB + (i*2+c)*4 + e//2
                op = "ds_read_u16_d16" if e % 2 == 0 else "ds_read_u16_d16_hi"
                g.ds(f"{op} v{d}, v{a+c} offset:{STG_OFF + 2*c}", [d])
    def lut(i, e):
        lut_addr(i, e); lut_read(i, e)
    def comb(i, t):
        if opt.comb != "perm" or opt.nolut: return
        for c in range(2):
            ev = LUTV + 2*(2*t) + c; od = LUTV + 2*(2*t+1) + c
            g.need([ev, od])
            I(f"v_perm_b32 v{WB + (i*2+c)*4 + t}, v{od}, v{ev}, s{52+c}")
    P0, P1, Q0, Q1 = 5, 6, 8, 9
    def xread(base, st, ringslot):
        a = base[st & 1]
        g.ds(f"ds_read_b128 {vr(XR + ringslot*4, 4)}, v{a} offset:{(st >> 1) * 2048}", R(XR + ringslot*4, 4))
    def raw_read1(i, e):
        rb = RAW + (i % 2) * 16
        k, off = slot_base(i)
        g.ds(f"ds_read_b64 {vr(rb + 2*e, 2)}, v{V_RA[k]} offset:{off + e*512}", R(rb + 2*e, 2))
    def raw_read2(i, e):
        rb = RAW + (i % 2) * 16
        k, off = slot_base(i)
        o = off // 512 + e
        g.ds(f"ds_read2st64_b64 {vr(rb + 2*e, 4)}, v{V_RA[k]} offset0:{o} offset1:{o+1}", R(rb + 2*e, 4))
    if opt.lutwaves < 4:
        I(f"s_cmp_ge_u32 s3, {opt.lutwaves}")
        I("s_cbranch_scc0 L_p1go")
        for _ in range(19): I("s_barrier")
        I("s_branch L_p2go")
        g.label("L_p1go")
    bset = set(barriers(opt))
    I("s_barrier")
    g.stamp(2)
    raw_reads(0)
    for i in range(1, NW + 1):
        if i % opt.PT == 0:
            if opt.PT > 1 and i < NW + 1:
                g.need(R(RAW + ((i-1) % 2) * 16, 16))
            I("s_barrier")
            if i in (6, 12, 18): g.stamp({6:4, 12:5, 18:6}[i])
        if i == 1: g.stamp(3)
        lut_addr(i-1, 0); lut_addr(i-1, 1)
        if i >= 2: comb(i-2, 2)
        if i >= 2: comb(i-2, 3)
        hy = opt.R and i >= 2
        hm = [(r, c) for r in range(opt.R) for c in range(2)] if hy else []
        ne = 8 - opt.he0
        per = -(-len(hm) // ne)
        for e in range(8):
            if hy and e == opt.hrd: hx_reads(i-2)
            if e + 2 < 8: lut_addr(i-1, e+2)
            lut_read(i-1, e)
            if e >= opt.he0 and hm: hx_mfma(i-2, *hm.pop(0))
            if i < NW: raw_read1(i, e)
            elif e < opt.D: xread((P0, P1), e, e)
            if e >= opt.he0:
                for _ in range(per - 1):
                    if hm: hx_mfma(i-2, *hm.pop(0))
            if e == 5: comb(i-1, 0)
            if e == 7: comb(i-1, 1)
        assert not hm
    if opt.R: hx_reads(NW-1)
    comb(NW-1, 2); comb(NW-1, 3)
    for r in range(opt.R):
        for c in range(2): hx_mfma(NW-1, r, c)
    hfill = []
    for r in range(opt.R):
        a0 = HA + r*8
        for q in range(4):
            hfill.append(f"v_cvt_pk_bf16_f32 v{a0+q}, v{a0+q}, v{a0+4+q}")
        hfill.append(("st", r))
    def hfill_one():
        if not hfill: return
        x = hfill.pop(0)
        if isinstance(x, tuple):
            r = x[1]
            I(f"s_mov_b32 s44, {r*147456}")
            I(f"buffer_store_dwordx4 {vr(HA + r*8, 4)}, v{V_HS}, s[12:15], s44 offen {opt.hflags}")
        else:
            I(x)
    if opt.comb != "perm":
        g.need(R(WB + (NW-1)*8, 8))
    if opt.lutwaves < 4:
        g.wait_lgkm(0)
        g.label("L_p2go")
    def epi_cvt(par, r):
        if opt.nocvt: return
        a0 = ACC + par*8; a1 = a0 + 4
        I(f"v_cvt_pk_bf16_f32 v{EP+r}, v{a0+r}, v{a1+r}")
    def epi_write(par, part=None):
        if opt.nowrite: return
        if part is None:
            g.ds(f"ds_write_b128 v{V_ST}, {vr(EP,4)} offset:{STG_OFF + par*4096}", [])
        else:
            g.ds(f"ds_write_b64 v{V_ST}, {vr(EP+2*part,2)} offset:{STG_OFF + par*4096 + 8*part}", [])
    def wait_epi():
        idx = -1
        for k, d in enumerate(g.lgkm):
            if len(d) == 0: idx = k
        if idx >= 0: g.wait_lgkm(len(g.lgkm) - 1 - idx)
    assert 18 % opt.RING == 0 and NSLOT == 8 and NW % 2 == 0
    def item(par):
        cur = (P0, P1) if par == 0 else (Q0, Q1)
        nxt = (Q0, Q1) if par == 0 else (P0, P1)
        sb = 17 - opt.D
        for s in range(18):
            xr = XR + (s % opt.RING) * 4
            if opt.wait2 and s % 2 == 0 and s + 1 < 18:
                g.need(R(xr, 4) + R(XR + ((s+1) % opt.RING) * 4, 4))
            else:
                g.need(R(xr, 4))
            def mf(c):
                acc = ACC + par*8 + c*4
                src = "0" if s == 0 else vr(acc, 4)
                I(f"v_mfma_f32_16x16x32_bf16 {vr(acc,4)}, {vr(WB + (s*2+c)*4, 4)}, {vr(xr,4)}, {src}")
            mf(0)
            ns = s + opt.D
            if ns < 18: xread(cur, ns, ns % opt.RING)
            else: xread(nxt, ns - 18, ns % opt.RING)
            e0 = sb - 3
            if e0 <= s < e0 + 4: epi_cvt(1 - par, s - e0)
            mf(1)
            w0 = sb + 1
            if s == w0: epi_write(1 - par, 0)
            if s == w0 + 2: epi_write(1 - par, 1)
            if s == sb:
                wait_epi()
                I("s_barrier")
            if par == 0:
                if s == 1: I("s_add_u32 s60, s60, 2")
                if s == 2: I(f"s_cmp_ge_u32 s60, {NSLOT}")
                if s == 3: I("s_cselect_b32 s61, s57, s56")
                if s == 4: I(f"s_and_b32 s60, s60, {NSLOT-1}")
            if s == w0 + 1: I(f"v_add_u32 v{cur[0]}, s61, v{cur[0]}")
            if s == w0 + 3: I(f"v_add_u32 v{cur[1]}, s61, v{cur[1]}")
            if s == 5: I("s_sub_u32 s46, s46, 1")
            if s == 6: I("s_cmp_eq_u32 s46, 0")
    I(f"s_mov_b32 s60, {NW % NSLOT}")
    I(f"s_mov_b32 s56, {2*SLOT}")
    I(f"s_mov_b32 s57, {-(NSLOT-2)*SLOT & 0xffffffff:#x}")
    I("s_mov_b32 s46, s36")
    g.stamp(7)
    keep = len(g.lines)
    g.lgkm = []
    item(0); item(1)
    st = list(g.lgkm)
    del g.lines[keep:]
    g.lgkm = list(st)
    g.label("L_p2")
    item(0)
    st0 = list(g.lgkm)
    I("s_cbranch_scc1 L_exit0")
    item(1)
    assert g.lgkm == st, (g.lgkm, st)
    I("s_cbranch_scc0 L_p2")
    I("s_nop 7")
    for r in range(4): epi_cvt(1, r)
    epi_write(1)
    I("s_waitcnt lgkmcnt(0)")
    I("s_barrier")
    g.stamp(11); g.stamp(14, True)
    g.dump(0, 0, opt.dbgwg)
    I("s_endpgm")
    g.label("L_exit0")
    g.lgkm = st0
    I("s_nop 7")
    for r in range(4): epi_cvt(0, r)
    epi_write(0)
    I("s_waitcnt lgkmcnt(0)")
    I("s_barrier")
    g.stamp(11); g.stamp(14, True)
    g.dump(0, 0, opt.dbgwg)
    g.label("L_exit")
    I("s_endpgm")
    g.raw('.section .rodata,"a"')
    g.raw(".p2align 6")
    g.raw(f".amdhsa_kernel {NAME}_kernel")
    g.raw("  .amdhsa_next_free_vgpr 256")
    g.raw(f"  .amdhsa_next_free_sgpr {96 if opt.dbg else 64}")
    g.raw("  .amdhsa_accum_offset 256")
    g.raw("  .amdhsa_group_segment_fixed_size 0")
    g.raw("  .amdhsa_kernarg_size 56")
    g.raw("  .amdhsa_user_sgpr_count 2")
    g.raw("  .amdhsa_user_sgpr_kernarg_segment_ptr 1")
    g.raw("  .amdhsa_system_sgpr_workgroup_id_x 1")
    g.raw("  .amdhsa_float_denorm_mode_32 3")
    g.raw(".end_amdhsa_kernel")
    return g.text()

if __name__ == "__main__":
    opt = Opt()
    for a in sys.argv[2:]:
        k, v = a.split("=")
        cur = getattr(opt, k)
        setattr(opt, k, type(cur)(v) if not isinstance(cur, bool) else v == "1")
    open(sys.argv[1], "w").write(build(opt))
```

```python
import sys
NAME = "standalone__normalfloat_lut_codebook_lookup__prompt"

class Opt:
    store_flags = "sc1"
    D = 6
    RING = 9
    A0 = 4
    AHEAD = 6
    prio_compute = 0
    prio_helper = 0
    addr = "pk"
    comb = "perm"
    rot = False
    wtouch = 0
    tflags = ""
    PT = 1
    wait2 = True
    dbg = False
    dbgwg = 0
    epi0 = 2
    xflags = ""
    wflags = ""
    xrot = False
    touch = True
    noepi = False
    dummy = 0
    lutwaves = 4
    p1 = 1
    raw2 = False
    nolut = False
    nowdma = False
    nocvt = False
    nowrite = False
    epi = "a"
    late = True
    wb64 = True
    noread = False
    nodma = False
    nostore = False
    nowait = False
    fast = True
    tlate = False
    dtail = True
    R = 0
    hflags = "sc1"
    he0 = 4
    hrd = 0

STG_OFF = 0
RING_OFF = 8192
SLOT = 18432
NSLOT = 8
LDS_BYTES = RING_OFF + NSLOT * SLOT
NW = 18
NX = 19
def geometry(opt):
    global SLOT, NSLOT, LDS_BYTES, NX
    SLOT = 16384 + max(2, opt.R) * 1024
    NSLOT = min(8, (163840 - RING_OFF) // SLOT)
    LDS_BYTES = RING_OFF + NSLOT * SLOT
    NX = 19 - opt.R

class Gen:
    def __init__(self):
        self.lines = []
        self.lgkm = []
        self.dbg = False
    def raw(self, s): self.lines.append(s)
    def label(self, l): self.lines.append(l + ":")
    def ins(self, s): self.lines.append("    " + s)
    def ds(self, s, dests=()):
        if len(self.lgkm) >= 15:
            self.wait_lgkm(11)
        self.ins(s)
        self.lgkm.append(set(dests))
    def wait_lgkm(self, n):
        if len(self.lgkm) > n:
            self.ins(f"s_waitcnt lgkmcnt({n})")
            self.lgkm = self.lgkm[len(self.lgkm) - n:] if n > 0 else []
    def need(self, regs):
        regs = set(regs)
        last = -1
        for i, d in enumerate(self.lgkm):
            if d & regs: last = i
        if last >= 0: self.wait_lgkm(len(self.lgkm) - 1 - last)
    def stamp(self, k, real=False):
        if self.dbg:
            self.ins(f"s_{'memrealtime' if real else 'memtime'} s[{64+2*k}:{65+2*k}]")
    def dump(self, role, wavecond, dbgwg):
        if not self.dbg: return
        lab = f"L_nodump{role}_{len(self.lines)}"
        self.ins("s_waitcnt lgkmcnt(0) vmcnt(0)")
        self.ins(f"s_cmp_eq_u32 s2, {dbgwg}")
        self.ins(f"s_cbranch_scc0 {lab}")
        self.ins(f"s_cmp_eq_u32 s3, {wavecond}")
        self.ins(f"s_cbranch_scc0 {lab}")
        self.ins("s_load_dwordx2 s[60:61], s[0:1], 40")
        self.ins("s_waitcnt lgkmcnt(0)")
        self.ins("s_and_b32 s61, s61, 0xffff")
        self.ins("s_mov_b32 s62, 256")
        self.ins("s_mov_b32 s63, 0x20000")
        self.ins("v_mov_b32 v20, 0")
        for k in range(16):
            self.ins(f"v_writelane_b32 v20, s{64+2*k}, {k}")
        self.ins("v_mbcnt_lo_u32_b32 v21, -1, 0")
        self.ins("v_mbcnt_hi_u32_b32 v21, -1, v21")
        self.ins("v_cmp_gt_u32 vcc, 16, v21")
        self.ins(f"v_lshlrev_b32 v21, 2, v21")
        self.ins(f"v_add_u32 v21, {role*64}, v21")
        self.ins("s_and_saveexec_b64 s[58:59], vcc")
        self.ins("buffer_store_dword v20, v21, s[60:63], 0 offen")
        self.ins("s_waitcnt vmcnt(0)")
        self.label(lab)
    def wsdump(self):
        if not self.dbg: return
        lab = f"L_nows_{len(self.lines)}"
        self.ins("s_waitcnt lgkmcnt(0) vmcnt(0)")
        self.ins("s_cmp_eq_u32 s3, 6")
        self.ins(f"s_cbranch_scc0 {lab}")
        self.ins("s_load_dwordx2 s[60:61], s[0:1], 48")
        self.ins("s_waitcnt lgkmcnt(0)")
        self.ins("s_and_b32 s61, s61, 0xffff")
        self.ins("s_mov_b32 s62, 65536")
        self.ins("s_mov_b32 s63, 0x20000")
        self.ins("v_mov_b32 v20, 0")
        self.ins("v_writelane_b32 v20, s94, 0")
        self.ins("v_writelane_b32 v20, s90, 1")
        self.ins("v_writelane_b32 v20, s92, 2")
        self.ins("v_writelane_b32 v20, s2, 3")
        self.ins("v_mbcnt_lo_u32_b32 v21, -1, 0")
        self.ins("v_mbcnt_hi_u32_b32 v21, -1, v21")
        self.ins("v_cmp_gt_u32 vcc, 4, v21")
        self.ins("v_lshlrev_b32 v21, 2, v21")
        self.ins("s_lshl_b32 s59, s2, 4")
        self.ins("s_and_saveexec_b64 s[56:57], vcc")
        self.ins("buffer_store_dword v20, v21, s[60:63], s59 offen")
        self.ins("s_waitcnt vmcnt(0)")
        self.ins("s_mov_b64 exec, s[56:57]")
        self.label(lab)
    def text(self): return "\n".join(self.lines) + "\n"

def R(base, n): return list(range(base, base + n))
def vr(base, n): return f"v[{base}:{base+n-1}]" if n > 1 else f"v{base}"

def barriers(opt):
    l = list(range(opt.PT - 1, NW, opt.PT))
    assert l[-1] == NW - 1
    return l + list(range(NW, NW + NX))

def issue_schedule(opt):
    total = NW + NX
    sched = {-1: list(range(opt.A0))}
    nxt = opt.A0
    def free(n, b):
        p = n - NSLOT
        if p < 0: return True
        if p < NW:
            if opt.PT > 1: return p <= b - 4
            return p <= b - (3 if opt.R else 2)
        return p <= b - 2
    for b in barriers(opt):
        lst = []
        if b < NW:
            n = opt.PT if b < NW - 4 else 2
        else:
            n = 2 if b <= NW + 1 else 1
        while n > 0 and nxt < total and nxt <= b + opt.AHEAD and free(nxt, b):
            lst.append(nxt); nxt += 1; n -= 1
        sched[b] = lst
    assert nxt == total, (nxt, total)
    done = set(sched[-1])
    for b in barriers(opt):
        assert all(i in done for i in range(b + 1)), (b, sched)
        done |= set(sched[b])
    return sched

def build(opt):
    geometry(opt)
    g = Gen(); g.dbg = opt.dbg
    I = g.ins
    g.raw(f"; @launch grid=(252,1,1) block=(512,1,1) lds={LDS_BYTES}")
    g.raw('.amdgcn_target "amdgcn-amd-amdhsa--gfx950"')
    g.raw(".text")
    g.raw(f".globl {NAME}_kernel")
    g.raw(".p2align 8")
    g.raw(f".type {NAME}_kernel,@function")
    g.label(f"{NAME}_kernel")
    I("s_cmp_ge_u32 s2, 252")
    I("s_cbranch_scc1 L_exit")
    g.stamp(0); g.stamp(15, True)
    I("s_load_dwordx4 s[20:23], s[0:1], 0")
    I("s_load_dwordx4 s[24:27], s[0:1], 16")
    I("s_load_dwordx2 s[28:29], s[0:1], 32")
    I("v_lshrrev_b32 v1, 6, v0")
    I("v_and_b32 v0, 63, v0")
    I("s_and_b32 s30, s2, 7")
    I("s_lshr_b32 s31, s2, 3")
    I("v_readfirstlane_b32 s3, v1")
    I("s_lshl_b32 s32, s30, 5")
    I("s_sub_i32 s33, s30, 4")
    I("s_max_i32 s33, s33, 0")
    I("s_sub_u32 s32, s32, s33")
    I("s_add_u32 s32, s32, s31")
    I("s_mul_i32 s33, s32, 9363")
    I("s_lshr_b32 s33, s33, 16")
    I("s_mul_i32 s34, s33, 7")
    I("s_sub_u32 s34, s32, s34")
    I("s_mul_i32 s35, s34, 18")
    I("s_min_u32 s36, s34, 2")
    I("s_add_u32 s35, s35, s36")
    I("s_cmp_lt_u32 s34, 2")
    I("s_cselect_b32 s36, 19, 18")
    if opt.xrot:
        I("s_mov_b32 s38, 3641")
        I("s_cselect_b32 s38, 3450, s38")
        I("s_lshl_b32 s39, s33, 2")
        I("s_mul_i32 s38, s38, s39")
        I("s_lshr_b32 s38, s38, 16")
        I("s_mul_i32 s38, s38, s36")
        I("s_sub_u32 s58, s39, s38")
    else:
        I("s_mov_b32 s58, 0")
    I("s_cmp_ge_u32 s3, 4")
    I("s_cbranch_scc0 L_compute")

    g.label("L_helper")
    if opt.prio_helper: I(f"s_setprio {opt.prio_helper}")
    I("s_cmp_ge_u32 s3, 6")
    I("s_cbranch_scc1 L_storer")
    I("s_sub_u32 s37, s3, 4")
    I("v_lshrrev_b32 v4, 5, v0")
    I("v_mul_u32_u24 v4, 18432, v4")
    I("v_and_b32 v5, 31, v0")
    I("v_lshl_add_u32 v2, v5, 4, v4")
    I("v_xor_b32 v5, 8, v5")
    I("v_lshl_add_u32 v3, v5, 4, v4")
    I("s_mul_i32 s40, s37, 294912")
    I("s_lshl_b32 s38, s37, 13")
    g.stamp(2)
    I("s_waitcnt lgkmcnt(0)")
    g.stamp(4)
    I("s_lshl_b32 s41, s33, 9")
    I("s_add_u32 s8, s22, s41")
    I("s_addc_u32 s9, s23, 0")
    I("s_and_b32 s9, s9, 0xffff")
    I("s_sub_u32 s10, 10616832, s41")
    I("s_mov_b32 s11, 0x20000")
    I("s_mul_i32 s41, s35, 18432")
    I("s_add_u32 s4, s20, s41")
    I("s_addc_u32 s5, s21, 0")
    I("s_and_b32 s5, s5, 0xffff")
    I("s_mul_i32 s6, s36, 18432")
    I("s_mov_b32 s7, 0x20000")
    if opt.R:
        I("v_lshrrev_b32 v26, 2, v0")
        I("v_lshrrev_b32 v27, 4, v0")
        I("v_sub_u32 v27, 4, v27")
        I("v_xor_b32 v27, v27, v0")
        I("v_and_b32 v27, 3, v27")
        I("v_mul_u32_u24 v26, 1152, v26")
        I("v_lshl_add_u32 v26, v27, 4, v26")
        I("s_mul_i32 s59, s37, 18432")
        I("s_lshl_b32 s60, s37, 10")
        I("s_mov_b32 s62, -1")
        I("s_mov_b32 s63, -1")
        if opt.R == 3:
            I("s_cmp_eq_u32 s37, 0")
            I("s_cselect_b32 s62, -1, 0")
            I("s_cselect_b32 s63, 0, -1")
    assert opt.R == 0 and not opt.rot
    def next_slot():
        I(f"s_add_u32 s61, s61, {SLOT}")
        I(f"s_cmp_eq_u32 s61, {NSLOT*SLOT}")
        I("s_cselect_b32 s61, 0, s61")
    def issueW():
        I("s_add_u32 m0, s38, s61")
        I("s_mov_b32 s44, s40")
        for u in range(8):
            v = "v2" if u < 4 else "v3"
            I(f"buffer_load_dwordx4 {v}, s[8:11], s44 offen {opt.wflags} lds")
            if u < 7:
                I("s_add_u32 m0, m0, 1024")
                I("s_add_u32 s44, s44, 36864")
        I("s_add_u32 s40, s40, 589824")
        next_slot()
    def issueX():
        I("s_add_u32 m0, s39, s61")
        for c in range(9):
            I(f"s_add_u32 s44, s{48+c}, s57")
            I(f"buffer_load_dwordx4 v6, s[4:7], s44 offen {opt.xflags} lds")
            if c < 8:
                I("s_add_u32 m0, m0, 2048")
        I("s_add_u32 s57, s57, 18432")
        I("s_cmp_eq_u32 s57, s6")
        I("s_cselect_b32 s57, 0, s57")
        next_slot()
    assert opt.A0 == 4 and opt.PT in (1, 2)
    I(f"s_add_u32 s38, s38, {RING_OFF}")
    I("s_mov_b32 s61, 0")
    def xsetup():
        I("v_lshrrev_b32 v7, 3, v0")
        I("v_lshrrev_b32 v8, 1, v7")
        I("s_lshl_b32 s42, s37, 2")
        I("v_add_u32 v8, s42, v8")
        I("v_and_b32 v9, 7, v0")
        I("v_xor_b32 v8, v8, v9")
        I("v_mul_u32_u24 v7, 1152, v7")
        I("v_lshl_add_u32 v6, v8, 4, v7")
        I("s_mul_i32 s42, s37, 9216")
        for c in range(9):
            I(f"s_add_u32 s{48+c}, s42, {c*128}")
        I("s_lshl_b32 s39, s37, 10")
        I(f"s_add_u32 s39, s39, {RING_OFF}")
        I("s_mov_b32 s57, 0")
    if opt.fast and opt.PT == 1:
        I("s_mov_b32 s46, 0")
        g.label("L_ldW")
        issueW()
        I("s_add_u32 s46, s46, 1")
        I("s_cmp_ge_u32 s46, 18")
        I("s_cbranch_scc1 L_ldWd")
        I("s_cmp_ge_u32 s46, 6")
        I("s_cbranch_scc1 L_ldWs")
        I("s_bitcmp1_b32 s46, 0")
        I("s_cbranch_scc1 L_ldW")
        I("s_cmp_eq_u32 s46, 2")
        I("s_cbranch_scc0 L_ldW4")
        g.stamp(1)
        xsetup()
        I("s_waitcnt vmcnt(8)")
        I("s_barrier")
        I("s_branch L_ldW")
        g.label("L_ldW4")
        I("s_waitcnt vmcnt(16)")
        I("s_barrier")
        I("s_branch L_ldW")
        g.label("L_ldWs")
        I("s_waitcnt vmcnt(24)")
        I("s_barrier")
        I("s_branch L_ldW")
        g.label("L_ldWd")
    else:
        I("s_mov_b32 s46, 4")
        g.label("L_ldA")
        issueW()
        I("s_sub_u32 s46, s46, 1")
        I("s_cmp_lg_u32 s46, 0")
        I("s_cbranch_scc1 L_ldA")
        g.stamp(1)
        xsetup()
        I(f"s_mov_b32 s46, {14 // opt.PT}")
        g.label("L_ldW")
        I(f"s_waitcnt vmcnt({8 * (4 - opt.PT)})")
        I("s_barrier")
        for _ in range(opt.PT): issueW()
        I("s_sub_u32 s46, s46, 1")
        I("s_cmp_lg_u32 s46, 0")
        I("s_cbranch_scc1 L_ldW")
    g.stamp(3)
    if opt.PT == 2:
        I("s_mov_b32 s46, 2")
        g.label("L_ldX2")
        I("s_waitcnt vmcnt(16)")
        I("s_barrier")
        issueX(); issueX()
        I("s_sub_u32 s46, s46, 1")
        I("s_cmp_lg_u32 s46, 0")
        I("s_cbranch_scc1 L_ldX2")
        I(f"s_mov_b32 s46, {NX - 4}")
    else:
        I(f"s_mov_b32 s46, {NX}")
    g.label("L_ldX")
    I("s_waitcnt vmcnt(24)")
    I("s_barrier")
    issueX()
    I("s_sub_u32 s46, s46, 1")
    I("s_cmp_lg_u32 s46, 0")
    I("s_cbranch_scc1 L_ldX")
    g.stamp(5)
    for n in (27, 18, 9, 0):
        I(f"s_waitcnt vmcnt({n})")
        I("s_barrier")
    g.stamp(7)
    I("s_barrier")
    I("s_cmp_eq_u32 s36, 19")
    I("s_cbranch_scc0 L_ld_end")
    I("s_barrier")
    g.label("L_ld_end")
    g.stamp(8); g.stamp(14, True)
    g.dump(1, 4, opt.dbgwg)
    I("s_endpgm")

    g.label("L_storer")
    I("s_sub_u32 s37, s3, 6")
    I("v_lshrrev_b32 v4, 5, v0")
    I("v_mul_u32_u24 v4, 18432, v4")
    I("v_and_b32 v5, 31, v0")
    I("v_lshl_add_u32 v2, v5, 4, v4")
    I("v_lshlrev_b32 v24, 4, v0")
    I("s_waitcnt lgkmcnt(0)")
    if opt.wtouch:
        I("s_lshl_b32 s41, s33, 9")
        I("s_add_u32 s8, s22, s41")
        I("s_addc_u32 s9, s23, 0")
        I("s_and_b32 s9, s9, 0xffff")
        I("s_sub_u32 s10, 10616832, s41")
        I("s_mov_b32 s11, 0x20000")
        I(f"s_add_u32 s40, s34, {opt.A0}")
        I("s_mul_i32 s40, s40, 589824")
        I("s_mul_i32 s42, s37, 294912")
        I("s_add_u32 s40, s40, s42")
        for rep in range(opt.wtouch):
            I("s_mov_b32 s44, s40")
            for u in range(8):
                I(f"buffer_load_dwordx4 v[{28+4*u}:{31+4*u}], v2, s[8:11], s44 offen {opt.tflags}")
                if u < 7: I("s_add_u32 s44, s44, 36864")
            I(f"s_add_u32 s40, s40, {7*589824}")
    if opt.tlate: I("s_barrier")
    if opt.touch:
        I("s_mov_b32 s4, s20")
        I("s_and_b32 s5, s21, 0xffff")
        I("s_mov_b32 s6, 2359296")
        I("s_mov_b32 s7, 0x20000")
        I("s_mul_i32 s41, s32, 9360")
        I("s_mul_i32 s42, s37, 5120")
        I("s_add_u32 s41, s41, s42")
        I("v_add_u32 v25, 4096, v24")
        for u in range(5):
            I(f"buffer_load_dwordx4 v[{60+4*u}:{63+4*u}], {'v24' if u < 4 else 'v25'}, s[4:7], s41 offen offset:{(u%4)*1024}")
    I("v_lshrrev_b32 v4, 4, v0")
    I("s_lshl_b32 s38, s37, 3")
    I("v_add_u32 v4, s38, v4")
    I("v_and_b32 v5, 15, v0")
    for u in range(2):
        I(f"v_add_u32 v8, {4*u}, v4")
        I("v_xor_b32 v9, v5, v8")
        I("v_lshlrev_b32 v9, 4, v9")
        I(f"v_lshl_add_u32 v{10+u}, v8, 8, v9")
        I("v_mul_u32_u24 v8, 9216, v8")
        I(f"v_lshl_add_u32 v{12+u}, v5, 4, v8")
    I("s_mul_i32 s39, s35, 147456")
    I("s_lshl_b32 s38, s33, 8")
    I("s_add_u32 s39, s39, s38")
    I("s_add_u32 s12, s28, s39")
    I("s_addc_u32 s13, s29, 0")
    I("s_and_b32 s13, s13, 0xffff")
    I("s_mul_i32 s14, s36, 147456")
    I("s_sub_u32 s14, s14, s38")
    I("s_mov_b32 s15, 0x20000")
    nb = len([b for b in barriers(opt) if b <= 19]) + (1 if opt.late else 0)
    I(f"s_mov_b32 s46, {nb - (1 if opt.tlate else 0)}")
    g.label("L_stA")
    I("s_barrier")
    I("s_sub_u32 s46, s46, 1")
    I("s_cmp_lg_u32 s46, 0")
    I("s_cbranch_scc1 L_stA")
    g.stamp(2); g.stamp(13, True)
    I(f"s_mov_b32 s44, {opt.R*147456}")
    I("s_mul_i32 s47, s36, 147456")
    I("s_mov_b32 s45, 0")
    I("s_waitcnt vmcnt(0)")
    def store_block():
        I("v_add_u32 v14, s45, v10")
        I("v_add_u32 v15, s45, v11")
        I(f"ds_read_b128 v[16:19], v14 offset:{STG_OFF}")
        I(f"ds_read_b128 v[20:23], v15 offset:{STG_OFF}")
        I("s_xor_b32 s45, s45, 4096")
        I("s_waitcnt lgkmcnt(1)")
        if not opt.nostore: I(f"buffer_store_dwordx4 v[16:19], v12, s[12:15], s44 offen {opt.store_flags}")
        I("s_waitcnt lgkmcnt(0)")
        if not opt.nostore: I(f"buffer_store_dwordx4 v[20:23], v13, s[12:15], s44 offen {opt.store_flags}")
        I("s_add_u32 s44, s44, 147456")
        I("s_cmp_eq_u32 s44, s47")
        I("s_cselect_b32 s44, 0, s44")
    if opt.late:
        I(f"s_sub_u32 s46, s36, {2 + opt.R}")
    else:
        I(f"s_sub_u32 s46, s36, {opt.R}")
    g.label("L_stB")
    I("s_barrier")
    store_block()
    I("s_sub_u32 s46, s46, 1")
    I("s_cmp_lg_u32 s46, 0")
    I("s_cbranch_scc1 L_stB")
    if opt.late:
        I("s_barrier")
        store_block()
        if not opt.dtail: store_block()
    g.stamp(3)
    if opt.dbg: I("s_waitcnt vmcnt(0)")
    g.stamp(4); g.stamp(14, True)
    g.wsdump()
    g.dump(2, 6, opt.dbgwg)
    I("s_endpgm")

    g.label("L_compute")
    if opt.prio_compute: I(f"s_setprio {opt.prio_compute}")
    WB = 112; ACC = 96; XR = 12; EP = 60; RAW = 16; LUTV = 96
    HA = 64; HX = [12, 52, 56, 60]; V_H = [50, 51, 0]; V_HS = 1
    V_LB = 48
    V_RA = [2, 3, 4]
    V_X0 = [5, 6, 7]; V_X1 = [8, 9, 10]
    V_ST = 11
    I("v_and_b32 v12, 15, v0")
    I("v_lshrrev_b32 v13, 4, v0")
    I("s_lshl_b32 s39, s3, 7")
    I("v_lshl_add_u32 v15, v12, 3, s39")
    I("v_and_b32 v14, 1, v13")
    I("v_lshlrev_b32 v14, 7, v14")
    I("v_xor_b32 v15, v15, v14")
    I(f"v_lshl_add_u32 v{V_RA[0]}, v13, 12, v15")
    I(f"v_add_u32 v{V_RA[0]}, {RING_OFF}, v{V_RA[0]}")
    I(f"v_add_u32 v{V_RA[1]}, {3*SLOT}, v{V_RA[0]}")
    I(f"v_add_u32 v{V_RA[2]}, {6*SLOT}, v{V_RA[0]}")
    I("v_lshrrev_b32 v14, 1, v12")
    I("v_xor_b32 v14, v14, v13")
    I("v_lshlrev_b32 v14, 4, v14")
    I("v_and_b32 v15, 7, v12")
    I("v_lshl_add_u32 v14, v15, 7, v14")
    I("v_lshrrev_b32 v15, 3, v12")
    I("v_lshl_add_u32 v14, v15, 10, v14")
    I(f"v_add_u32 v5, {RING_OFF + (NW % NSLOT) * SLOT}, v14")
    I("v_xor_b32 v6, 64, v5")
    I(f"v_add_u32 v8, {SLOT}, v5")
    I(f"v_add_u32 v9, {SLOT}, v6")
    I("s_lshl_b32 s39, s3, 2")
    I("v_add_u32 v14, s39, v13")
    I("v_xor_b32 v14, v14, v12")
    I("v_lshlrev_b32 v14, 4, v14")
    I(f"v_lshl_add_u32 v{V_ST}, v12, 8, v14")
    I("s_lshl_b32 s39, s3, 11")
    I("v_and_b32 v14, 31, v0")
    I(f"v_lshl_add_u32 v{V_LB}, v14, 2, s39")
    I(f"v_mov_b32 v{V_LB+1}, v{V_LB}")
    I("v_lshrrev_b32 v15, 5, v0")
    I(f"v_lshl_add_u32 v50, v15, 10, v{V_LB}")
    I("v_lshlrev_b32 v15, 4, v15")
    I("v_lshlrev_b32 v14, 2, v12")
    I("s_mov_b32 s50, 0x43000000")
    I("s_mov_b32 s51, 0x43000000")
    I("s_mov_b32 s52, 0x05040100")
    I("s_mov_b32 s53, 0x07060302")
    g.stamp(8)
    I("s_waitcnt lgkmcnt(0)")
    g.stamp(9)
    I("s_mov_b32 s16, s26")
    I("s_and_b32 s17, s27, 0xffff")
    I("s_mov_b32 s18, 9216")
    I("s_mov_b32 s19, 0x20000")
    I("s_mov_b32 s4, s24")
    I("s_and_b32 s5, s25, 0xffff")
    I("s_mov_b32 s6, 32")
    I("s_mov_b32 s7, 0x20000")
    I("s_lshl_b32 s38, s33, 8")
    I("s_lshl_b32 s39, s3, 6")
    I("s_add_u32 s38, s38, s39")
    I("buffer_load_dword v51, v14, s[16:19], s38 offen")
    I("buffer_load_dwordx4 v[52:55], v15, s[4:7], 0 offen")
    if opt.dtail:
        I("v_mul_u32_u24 v7, 9216, v12")
        I("v_lshl_add_u32 v7, v13, 4, v7")
        I("s_lshl_b32 s39, s3, 6")
        I("v_add_u32 v7, s39, v7")
        I("s_add_u32 s39, s35, s36")
        I("s_sub_u32 s39, s39, 1")
        I("s_mul_i32 s39, s39, 147456")
        I("s_lshl_b32 s38, s33, 8")
        I("s_add_u32 s39, s39, s38")
        I("s_add_u32 s12, s28, s39")
        I("s_addc_u32 s13, s29, 0")
        I("s_and_b32 s13, s13, 0xffff")
        I("s_sub_u32 s14, 147456, s38")
        I("s_mov_b32 s15, 0x20000")
    I("s_waitcnt vmcnt(0)")
    g.stamp(10)
    I("v_lshlrev_b32 v56, 16, v51")
    I("v_and_b32 v57, 0xffff0000, v51")
    for m in range(4):
        I(f"v_lshlrev_b32 v58, 16, v{52+m}")
        I(f"v_and_b32 v59, 0xffff0000, v{52+m}")
        for b in range(2):
            I(f"v_mul_f32 v60, v{58+b}, v56")
            I(f"v_mul_f32 v61, v{58+b}, v57")
            I(f"v_cvt_pk_bf16_f32 v{62+b}, v60, v61")
            I(f"ds_write_b32 v50, v{62+b} offset:{STG_OFF + (2*m+b)*128}")
    if opt.R:
        I("v_lshrrev_b32 v14, 2, v12")
        I("v_sub_u32 v14, 4, v14")
        I("v_xor_b32 v14, v14, v13")
        I("v_and_b32 v14, 3, v14")
        I("v_lshlrev_b32 v14, 4, v14")
        I("v_lshl_add_u32 v14, v12, 6, v14")
        I(f"v_add_u32 v{V_H[0]}, {RING_OFF + 16384}, v14")
        I(f"v_add_u32 v{V_H[1]}, {3*SLOT}, v{V_H[0]}")
        I(f"v_add_u32 v{V_H[2]}, {6*SLOT}, v{V_H[0]}")
        I("v_mul_u32_u24 v14, 9216, v12")
        I("v_lshl_add_u32 v14, v13, 4, v14")
        I("s_lshl_b32 s39, s3, 6")
        I(f"v_add_u32 v{V_HS}, s39, v14")
        I("s_mul_i32 s39, s35, 147456")
        I("s_lshl_b32 s38, s33, 8")
        I("s_add_u32 s39, s39, s38")
        I("s_add_u32 s12, s28, s39")
        I("s_addc_u32 s13, s29, 0")
        I("s_and_b32 s13, s13, 0xffff")
        I("s_mul_i32 s14, s36, 147456")
        I("s_sub_u32 s14, s14, s38")
        I("s_mov_b32 s15, 0x20000")
    I("s_waitcnt lgkmcnt(0)")
    g.stamp(1)

    def hx_reads(st):
        k, off = slot_base(st)
        for r in range(opt.R):
            g.ds(f"ds_read_b128 {vr(HX[r], 4)}, v{V_H[k]} offset:{off + r*1024}", R(HX[r], 4))
    def hx_mfma(st, r, c):
        g.need(R(HX[r], 4))
        acc = HA + r*8 + c*4
        src = "0" if st == 0 else vr(acc, 4)
        I(f"v_mfma_f32_16x16x32_bf16 {vr(acc,4)}, {vr(WB + (st*2+c)*4, 4)}, {vr(HX[r],4)}, {src}")
    def slot_base(it):
        sl = it % NSLOT
        return sl // 3, (sl % 3) * SLOT
    def raw_reads(i):
        rb = RAW + (i % 2) * 16
        k, off = slot_base(i)
        for e in range(8):
            g.ds(f"ds_read_b64 {vr(rb + 2*e, 2)}, v{V_RA[k]} offset:{off + e*512}", R(rb + 2*e, 2))
    def lut_addr(i, e):
        if opt.nolut: return
        rb = RAW + (i % 2) * 16
        a = rb + 2*e
        g.need(R(a, 2))
        if opt.addr == "pk":
            I(f"v_pk_fma_f32 {vr(a,2)}, {vr(a,2)}, s[50:51], {vr(V_LB,2)}")
        else:
            for c in range(2):
                I(f"v_lshl_add_u32 v{a+c}, v{a+c}, 7, v{V_LB}")
    def lut_read(i, e):
        if opt.nolut: return
        rb = RAW + (i % 2) * 16
        a = rb + 2*e
        for c in range(2):
            if opt.comb == "perm":
                g.ds(f"ds_read_b32 v{LUTV+2*e+c}, v{a+c} offset:{STG_OFF}", [LUTV + 2*e + c])
            else:
                d = WB + (i*2+c)*4 + e//2
                op = "ds_read_u16_d16" if e % 2 == 0 else "ds_read_u16_d16_hi"
                g.ds(f"{op} v{d}, v{a+c} offset:{STG_OFF + 2*c}", [d])
    def lut(i, e):
        lut_addr(i, e); lut_read(i, e)
    def comb(i, t):
        if opt.comb != "perm" or opt.nolut: return
        for c in range(2):
            ev = LUTV + 2*(2*t) + c; od = LUTV + 2*(2*t+1) + c
            g.need([ev, od])
            I(f"v_perm_b32 v{WB + (i*2+c)*4 + t}, v{od}, v{ev}, s{52+c}")
    P0, P1, Q0, Q1 = 5, 6, 8, 9
    def xread(base, st, ringslot):
        a = base[st & 1]
        g.ds(f"ds_read_b128 {vr(XR + ringslot*4, 4)}, v{a} offset:{(st >> 1) * 2048}", R(XR + ringslot*4, 4))
    def raw_read1(i, e):
        rb = RAW + (i % 2) * 16
        k, off = slot_base(i)
        g.ds(f"ds_read_b64 {vr(rb + 2*e, 2)}, v{V_RA[k]} offset:{off + e*512}", R(rb + 2*e, 2))
    def raw_read2(i, e):
        rb = RAW + (i % 2) * 16
        k, off = slot_base(i)
        o = off // 512 + e
        g.ds(f"ds_read2st64_b64 {vr(rb + 2*e, 4)}, v{V_RA[k]} offset0:{o} offset1:{o+1}", R(rb + 2*e, 4))
    if opt.lutwaves < 4:
        I(f"s_cmp_ge_u32 s3, {opt.lutwaves}")
        I("s_cbranch_scc0 L_p1go")
        for _ in range(19): I("s_barrier")
        I("s_branch L_p2go")
        g.label("L_p1go")
    bset = set(barriers(opt))
    I("s_barrier")
    g.stamp(2)
    raw_reads(0)
    for i in range(1, NW + 1):
        if i % opt.PT == 0:
            if opt.PT > 1 and i < NW + 1:
                g.need(R(RAW + ((i-1) % 2) * 16, 16))
            I("s_barrier")
            if i in (6, 12, 18): g.stamp({6:4, 12:5, 18:6}[i])
        if i == 1: g.stamp(3)
        lut_addr(i-1, 0); lut_addr(i-1, 1)
        if i >= 2: comb(i-2, 2)
        if i >= 2: comb(i-2, 3)
        hy = opt.R and i >= 2
        hm = [(r, c) for r in range(opt.R) for c in range(2)] if hy else []
        ne = 8 - opt.he0
        per = -(-len(hm) // ne)
        for e in range(8):
            if hy and e == opt.hrd: hx_reads(i-2)
            if e + 2 < 8: lut_addr(i-1, e+2)
            lut_read(i-1, e)
            if e >= opt.he0 and hm: hx_mfma(i-2, *hm.pop(0))
            if i < NW: raw_read1(i, e)
            elif e < opt.D: xread((P0, P1), e, e)
            if e >= opt.he0:
                for _ in range(per - 1):
                    if hm: hx_mfma(i-2, *hm.pop(0))
            if e == 5: comb(i-1, 0)
            if e == 7: comb(i-1, 1)
        assert not hm
    if opt.R: hx_reads(NW-1)
    comb(NW-1, 2); comb(NW-1, 3)
    for r in range(opt.R):
        for c in range(2): hx_mfma(NW-1, r, c)
    hfill = []
    for r in range(opt.R):
        a0 = HA + r*8
        for q in range(4):
            hfill.append(f"v_cvt_pk_bf16_f32 v{a0+q}, v{a0+q}, v{a0+4+q}")
        hfill.append(("st", r))
    def hfill_one():
        if not hfill: return
        x = hfill.pop(0)
        if isinstance(x, tuple):
            r = x[1]
            I(f"s_mov_b32 s44, {r*147456}")
            I(f"buffer_store_dwordx4 {vr(HA + r*8, 4)}, v{V_HS}, s[12:15], s44 offen {opt.hflags}")
        else:
            I(x)
    if opt.comb != "perm":
        g.need(R(WB + (NW-1)*8, 8))
    if opt.lutwaves < 4:
        g.wait_lgkm(0)
        g.label("L_p2go")
    def epi_cvt(par, r):
        if opt.nocvt: return
        a0 = ACC + par*8; a1 = a0 + 4
        I(f"v_cvt_pk_bf16_f32 v{EP+r}, v{a0+r}, v{a1+r}")
    def epi_write(par, part=None):
        if opt.nowrite: return
        if part is None:
            g.ds(f"ds_write_b128 v{V_ST}, {vr(EP,4)} offset:{STG_OFF + par*4096}", [])
        else:
            g.ds(f"ds_write_b64 v{V_ST}, {vr(EP+2*part,2)} offset:{STG_OFF + par*4096 + 8*part}", [])
    def wait_epi():
        idx = -1
        for k, d in enumerate(g.lgkm):
            if len(d) == 0: idx = k
        if idx >= 0: g.wait_lgkm(len(g.lgkm) - 1 - idx)
    assert 18 % opt.RING == 0 and NSLOT == 8 and NW % 2 == 0
    def item(par):
        cur = (P0, P1) if par == 0 else (Q0, Q1)
        nxt = (Q0, Q1) if par == 0 else (P0, P1)
        sb = 17 - opt.D
        for s in range(18):
            xr = XR + (s % opt.RING) * 4
            if opt.wait2 and s % 2 == 0 and s + 1 < 18:
                g.need(R(xr, 4) + R(XR + ((s+1) % opt.RING) * 4, 4))
            else:
                g.need(R(xr, 4))
            def mf(c):
                acc = ACC + par*8 + c*4
                src = "0" if s == 0 else vr(acc, 4)
                I(f"v_mfma_f32_16x16x32_bf16 {vr(acc,4)}, {vr(WB + (s*2+c)*4, 4)}, {vr(xr,4)}, {src}")
            mf(0)
            ns = s + opt.D
            if ns < 18: xread(cur, ns, ns % opt.RING)
            else: xread(nxt, ns - 18, ns % opt.RING)
            e0 = sb - 3
            if e0 <= s < e0 + 4: epi_cvt(1 - par, s - e0)
            mf(1)
            w0 = sb + 1
            if s == w0: epi_write(1 - par, 0)
            if s == w0 + 2: epi_write(1 - par, 1)
            if s == sb:
                wait_epi()
                I("s_barrier")
            if par == 0:
                if s == 1: I("s_add_u32 s60, s60, 2")
                if s == 2: I(f"s_cmp_ge_u32 s60, {NSLOT}")
                if s == 3: I("s_cselect_b32 s61, s57, s56")
                if s == 4: I(f"s_and_b32 s60, s60, {NSLOT-1}")
            if s == w0 + 1: I(f"v_add_u32 v{cur[0]}, s61, v{cur[0]}")
            if s == w0 + 3: I(f"v_add_u32 v{cur[1]}, s61, v{cur[1]}")
            if s == 5: I("s_sub_u32 s46, s46, 1")
            if s == 6: I("s_cmp_eq_u32 s46, 0")
    I(f"s_mov_b32 s60, {NW % NSLOT}")
    I(f"s_mov_b32 s56, {2*SLOT}")
    I(f"s_mov_b32 s57, {-(NSLOT-2)*SLOT & 0xffffffff:#x}")
    I("s_mov_b32 s46, s36")
    g.stamp(7)
    keep = len(g.lines)
    g.lgkm = []
    item(0); item(1)
    st = list(g.lgkm)
    del g.lines[keep:]
    g.lgkm = list(st)
    g.label("L_p2")
    item(0)
    st0 = list(g.lgkm)
    I("s_cbranch_scc1 L_exit0")
    item(1)
    assert g.lgkm == st, (g.lgkm, st)
    I("s_cbranch_scc0 L_p2")
    if opt.dtail:
        I("s_waitcnt lgkmcnt(0)")
        I("s_barrier")
        I("s_nop 4")
        for r in range(4): epi_cvt(1, r)
        I(f"buffer_store_dwordx4 {vr(EP,4)}, v7, s[12:15], 0 offen {opt.hflags}")
    else:
        I("s_nop 7")
        for r in range(4): epi_cvt(1, r)
        epi_write(1)
        I("s_waitcnt lgkmcnt(0)")
        I("s_barrier")
    g.stamp(11); g.stamp(14, True)
    g.dump(0, 0, opt.dbgwg)
    I("s_endpgm")
    g.label("L_exit0")
    g.lgkm = st0
    if opt.dtail:
        I("s_waitcnt lgkmcnt(0)")
        I("s_barrier")
        I("s_nop 4")
        for r in range(4): epi_cvt(0, r)
        I(f"buffer_store_dwordx4 {vr(EP,4)}, v7, s[12:15], 0 offen {opt.hflags}")
    else:
        I("s_nop 7")
        for r in range(4): epi_cvt(0, r)
        epi_write(0)
        I("s_waitcnt lgkmcnt(0)")
        I("s_barrier")
    g.stamp(11); g.stamp(14, True)
    g.dump(0, 0, opt.dbgwg)
    g.label("L_exit")
    I("s_endpgm")
    g.raw('.section .rodata,"a"')
    g.raw(".p2align 6")
    g.raw(f".amdhsa_kernel {NAME}_kernel")
    g.raw("  .amdhsa_next_free_vgpr 256")
    g.raw(f"  .amdhsa_next_free_sgpr {96 if opt.dbg else 64}")
    g.raw("  .amdhsa_accum_offset 256")
    g.raw("  .amdhsa_group_segment_fixed_size 0")
    g.raw("  .amdhsa_kernarg_size 56")
    g.raw("  .amdhsa_user_sgpr_count 2")
    g.raw("  .amdhsa_user_sgpr_kernarg_segment_ptr 1")
    g.raw("  .amdhsa_system_sgpr_workgroup_id_x 1")
    g.raw("  .amdhsa_float_denorm_mode_32 3")
    g.raw(".end_amdhsa_kernel")
    return g.text()

if __name__ == "__main__":
    opt = Opt()
    for a in sys.argv[2:]:
        k, v = a.split("=")
        cur = getattr(opt, k)
        setattr(opt, k, type(cur)(v) if not isinstance(cur, bool) else v == "1")
    open(sys.argv[1], "w").write(build(opt))
```

```python
import sys
NAME = "standalone__normalfloat_lut_codebook_lookup__prompt"

class Opt:
    store_flags = "sc1"
    D = 6
    RING = 9
    A0 = 4
    AHEAD = 6
    prio_compute = 0
    prio_helper = 0
    addr = "pk"
    comb = "perm"
    rot = False
    wtouch = 0
    tflags = ""
    PT = 1
    wait2 = True
    dbg = False
    dbgwg = 0
    epi0 = 2
    xflags = ""
    wflags = ""
    xrot = False
    touch = True
    noepi = False
    dummy = 0
    lutwaves = 4
    p1 = 1
    raw2 = False
    nolut = False
    nowdma = False
    nocvt = False
    nowrite = False
    epi = "a"
    late = True
    wb64 = True
    noread = False
    nodma = False
    nostore = False
    nowait = False
    fast = False
    tlate = False
    lutlate = True
    dtail = False
    R = 0
    hflags = "sc1"
    hb = 1
    ltb = 0
    ltouch = 0
    xa = 0
    he0 = 2
    hrd = 0

STG_OFF = 0
RING_OFF = 8192
SLOT = 18432
NSLOT = 8
LDS_BYTES = RING_OFF + NSLOT * SLOT
NW = 18
NX = 19
def geometry(opt):
    global SLOT, NSLOT, LDS_BYTES, NX
    SLOT = 18432
    NSLOT = 8
    LDS_BYTES = RING_OFF + NSLOT * SLOT
    NX = 19 - opt.R

class Gen:
    def __init__(self):
        self.lines = []
        self.lgkm = []
        self.dbg = False
    def raw(self, s): self.lines.append(s)
    def label(self, l): self.lines.append(l + ":")
    def ins(self, s): self.lines.append("    " + s)
    def ds(self, s, dests=()):
        if len(self.lgkm) >= 15:
            self.wait_lgkm(11)
        self.ins(s)
        self.lgkm.append(set(dests))
    def wait_lgkm(self, n):
        if len(self.lgkm) > n:
            self.ins(f"s_waitcnt lgkmcnt({n})")
            self.lgkm = self.lgkm[len(self.lgkm) - n:] if n > 0 else []
    def need(self, regs):
        regs = set(regs)
        last = -1
        for i, d in enumerate(self.lgkm):
            if d & regs: last = i
        if last >= 0: self.wait_lgkm(len(self.lgkm) - 1 - last)
    def stamp(self, k, real=False):
        if self.dbg:
            self.ins(f"s_{'memrealtime' if real else 'memtime'} s[{64+2*k}:{65+2*k}]")
    def dump(self, role, wavecond, dbgwg):
        if not self.dbg: return
        lab = f"L_nodump{role}_{len(self.lines)}"
        self.ins("s_waitcnt lgkmcnt(0) vmcnt(0)")
        self.ins(f"s_cmp_eq_u32 s2, {dbgwg}")
        self.ins(f"s_cbranch_scc0 {lab}")
        self.ins(f"s_cmp_eq_u32 s3, {wavecond}")
        self.ins(f"s_cbranch_scc0 {lab}")
        self.ins("s_load_dwordx2 s[60:61], s[0:1], 40")
        self.ins("s_waitcnt lgkmcnt(0)")
        self.ins("s_and_b32 s61, s61, 0xffff")
        self.ins("s_mov_b32 s62, 256")
        self.ins("s_mov_b32 s63, 0x20000")
        self.ins("v_mov_b32 v20, 0")
        for k in range(16):
            self.ins(f"v_writelane_b32 v20, s{64+2*k}, {k}")
        self.ins("v_mbcnt_lo_u32_b32 v21, -1, 0")
        self.ins("v_mbcnt_hi_u32_b32 v21, -1, v21")
        self.ins("v_cmp_gt_u32 vcc, 16, v21")
        self.ins(f"v_lshlrev_b32 v21, 2, v21")
        self.ins(f"v_add_u32 v21, {role*64}, v21")
        self.ins("s_and_saveexec_b64 s[58:59], vcc")
        self.ins("buffer_store_dword v20, v21, s[60:63], 0 offen")
        self.ins("s_waitcnt vmcnt(0)")
        self.label(lab)
    def wsdump(self):
        if not self.dbg: return
        lab = f"L_nows_{len(self.lines)}"
        self.ins("s_waitcnt lgkmcnt(0) vmcnt(0)")
        self.ins("s_cmp_eq_u32 s3, 6")
        self.ins(f"s_cbranch_scc0 {lab}")
        self.ins("s_load_dwordx2 s[60:61], s[0:1], 48")
        self.ins("s_waitcnt lgkmcnt(0)")
        self.ins("s_and_b32 s61, s61, 0xffff")
        self.ins("s_mov_b32 s62, 65536")
        self.ins("s_mov_b32 s63, 0x20000")
        self.ins("v_mov_b32 v20, 0")
        self.ins("v_writelane_b32 v20, s94, 0")
        self.ins("v_writelane_b32 v20, s90, 1")
        self.ins("v_writelane_b32 v20, s92, 2")
        self.ins("v_writelane_b32 v20, s2, 3")
        self.ins("v_mbcnt_lo_u32_b32 v21, -1, 0")
        self.ins("v_mbcnt_hi_u32_b32 v21, -1, v21")
        self.ins("v_cmp_gt_u32 vcc, 4, v21")
        self.ins("v_lshlrev_b32 v21, 2, v21")
        self.ins("s_lshl_b32 s59, s2, 4")
        self.ins("s_and_saveexec_b64 s[56:57], vcc")
        self.ins("buffer_store_dword v20, v21, s[60:63], s59 offen")
        self.ins("s_waitcnt vmcnt(0)")
        self.ins("s_mov_b64 exec, s[56:57]")
        self.label(lab)
    def text(self): return "\n".join(self.lines) + "\n"

def R(base, n): return list(range(base, base + n))
def vr(base, n): return f"v[{base}:{base+n-1}]" if n > 1 else f"v{base}"

def barriers(opt):
    l = list(range(opt.PT - 1, NW, opt.PT))
    assert l[-1] == NW - 1
    return l + list(range(NW, NW + NX))

def issue_schedule(opt):
    total = NW + NX
    sched = {-1: list(range(opt.A0))}
    nxt = opt.A0
    def free(n, b):
        p = n - NSLOT
        if p < 0: return True
        if p < NW:
            if opt.PT > 1: return p <= b - 4
            return p <= b - (3 if opt.R else 2)
        return p <= b - 2
    for b in barriers(opt):
        lst = []
        if b < NW:
            n = opt.PT if b < NW - 4 else 2
        else:
            n = 2 if b <= NW + 1 else 1
        while n > 0 and nxt < total and nxt <= b + opt.AHEAD and free(nxt, b):
            lst.append(nxt); nxt += 1; n -= 1
        sched[b] = lst
    assert nxt == total, (nxt, total)
    done = set(sched[-1])
    for b in barriers(opt):
        assert all(i in done for i in range(b + 1)), (b, sched)
        done |= set(sched[b])
    return sched

def build(opt):
    geometry(opt)
    g = Gen(); g.dbg = opt.dbg
    I = g.ins
    g.raw(f"; @launch grid=(252,1,1) block=(512,1,1) lds={LDS_BYTES}")
    g.raw('.amdgcn_target "amdgcn-amd-amdhsa--gfx950"')
    g.raw(".text")
    g.raw(f".globl {NAME}_kernel")
    g.raw(".p2align 8")
    g.raw(f".type {NAME}_kernel,@function")
    g.label(f"{NAME}_kernel")
    I("s_cmp_ge_u32 s2, 252")
    I("s_cbranch_scc1 L_exit")
    g.stamp(0); g.stamp(15, True)
    I("s_load_dwordx4 s[20:23], s[0:1], 0")
    I("s_load_dwordx4 s[24:27], s[0:1], 16")
    I("s_load_dwordx2 s[28:29], s[0:1], 32")
    I("v_lshrrev_b32 v1, 6, v0")
    I("v_and_b32 v0, 63, v0")
    I("s_and_b32 s30, s2, 7")
    I("s_lshr_b32 s31, s2, 3")
    I("v_readfirstlane_b32 s3, v1")
    I("s_lshl_b32 s32, s30, 5")
    I("s_sub_i32 s33, s30, 4")
    I("s_max_i32 s33, s33, 0")
    I("s_sub_u32 s32, s32, s33")
    I("s_add_u32 s32, s32, s31")
    I("s_mul_i32 s33, s32, 9363")
    I("s_lshr_b32 s33, s33, 16")
    I("s_mul_i32 s34, s33, 7")
    I("s_sub_u32 s34, s32, s34")
    I("s_mul_i32 s35, s34, 18")
    I("s_min_u32 s36, s34, 2")
    I("s_add_u32 s35, s35, s36")
    I("s_cmp_lt_u32 s34, 2")
    I("s_cselect_b32 s36, 19, 18")
    if opt.xrot:
        I("s_mov_b32 s38, 3641")
        I("s_cselect_b32 s38, 3450, s38")
        I("s_lshl_b32 s39, s33, 2")
        I("s_mul_i32 s38, s38, s39")
        I("s_lshr_b32 s38, s38, 16")
        I("s_mul_i32 s38, s38, s36")
        I("s_sub_u32 s58, s39, s38")
    else:
        I("s_mov_b32 s58, 0")
    I("s_cmp_ge_u32 s3, 4")
    I("s_cbranch_scc0 L_compute")

    g.label("L_helper")
    if opt.prio_helper: I(f"s_setprio {opt.prio_helper}")
    I("s_cmp_ge_u32 s3, 6")
    I("s_cbranch_scc1 L_storer")
    I("s_sub_u32 s37, s3, 4")
    I("v_lshrrev_b32 v4, 5, v0")
    I("v_mul_u32_u24 v4, 18432, v4")
    I("v_and_b32 v5, 31, v0")
    I("v_lshl_add_u32 v2, v5, 4, v4")
    I("v_xor_b32 v5, 8, v5")
    I("v_lshl_add_u32 v3, v5, 4, v4")
    I("s_mul_i32 s40, s37, 294912")
    I("s_lshl_b32 s38, s37, 13")
    def xsetup():
        I("v_lshrrev_b32 v7, 3, v0")
        I("v_lshrrev_b32 v8, 1, v7")
        I("s_lshl_b32 s42, s37, 2")
        I("v_add_u32 v8, s42, v8")
        I("v_and_b32 v9, 7, v0")
        I("v_xor_b32 v8, v8, v9")
        I("v_mul_u32_u24 v7, 1152, v7")
        I("v_lshl_add_u32 v6, v8, 4, v7")
        I("s_mul_i32 s42, s37, 9216")
        for c in range(9):
            I(f"s_add_u32 s{48+c}, s42, {c*128}")
        I("s_lshl_b32 s39, s37, 10")
        I(f"s_add_u32 s39, s39, {RING_OFF}")
        I("s_mov_b32 s57, 0")
    xsetup()
    I("s_lshl_b32 s41, s33, 9")
    I("s_sub_u32 s10, 10616832, s41")
    I("s_mov_b32 s11, 0x20000")
    I("s_mul_i32 s45, s35, 18432")
    I("s_mul_i32 s6, s36, 18432")
    I("s_mov_b32 s7, 0x20000")
    def xsrd():
        I("s_add_u32 s4, s20, s45")
        I("s_addc_u32 s5, s21, 0")
        I("s_and_b32 s5, s5, 0xffff")
    assert not opt.rot
    WS = NSLOT - opt.R
    X0SLOT = 0 if opt.R else NW % NSLOT
    def next_slot(ns=NSLOT):
        I(f"s_add_u32 s61, s61, {SLOT}")
        I(f"s_cmp_eq_u32 s61, {ns*SLOT}")
        I("s_cselect_b32 s61, 0, s61")
    def issueW():
        I("s_add_u32 m0, s38, s61")
        I("s_mov_b32 s44, s40")
        for u in range(8):
            v = "v2" if u < 4 else "v3"
            I(f"buffer_load_dwordx4 {v}, s[8:11], s44 offen {opt.wflags} lds")
            if u < 7:
                I("s_add_u32 m0, m0, 1024")
                I("s_add_u32 s44, s44, 36864")
        I("s_add_u32 s40, s40, 589824")
        next_slot(WS)
    def issueX():
        I("s_add_u32 m0, s39, s61")
        for c in range(9):
            I(f"s_add_u32 s44, s{48+c}, s57")
            I(f"buffer_load_dwordx4 v6, s[4:7], s44 offen {opt.xflags} lds")
            if c < 8:
                I("s_add_u32 m0, m0, 2048")
        I("s_add_u32 s57, s57, 18432")
        I("s_cmp_eq_u32 s57, s6")
        I("s_cselect_b32 s57, 0, s57")
        next_slot()
    assert opt.A0 == 4 and opt.PT in (1, 2)
    I(f"s_add_u32 s38, s38, {RING_OFF}")
    I("s_mov_b32 s61, 0")
    I("s_mov_b32 s46, 4")
    g.stamp(2)
    I("s_waitcnt lgkmcnt(0)")
    g.stamp(4)
    I("s_add_u32 s8, s22, s41")
    I("s_addc_u32 s9, s23, 0")
    I("s_and_b32 s9, s9, 0xffff")
    assert not opt.fast
    if opt.fast and opt.PT == 1:
        I("s_mov_b32 s46, 0")
        g.label("L_ldW")
        issueW()
        I("s_add_u32 s46, s46, 1")
        I("s_cmp_ge_u32 s46, 18")
        I("s_cbranch_scc1 L_ldWd")
        I("s_cmp_ge_u32 s46, 6")
        I("s_cbranch_scc1 L_ldWs")
        I("s_bitcmp1_b32 s46, 0")
        I("s_cbranch_scc1 L_ldW")
        I("s_cmp_eq_u32 s46, 2")
        I("s_cbranch_scc0 L_ldW4")
        g.stamp(1)
        I("s_waitcnt vmcnt(8)")
        I("s_barrier")
        I("s_branch L_ldW")
        g.label("L_ldW4")
        I("s_waitcnt vmcnt(16)")
        I("s_barrier")
        I("s_branch L_ldW")
        g.label("L_ldWs")
        I("s_waitcnt vmcnt(24)")
        I("s_barrier")
        I("s_branch L_ldW")
        g.label("L_ldWd")
    else:
        g.label("L_ldA")
        issueW()
        I("s_sub_u32 s46, s46, 1")
        I("s_cmp_lg_u32 s46, 0")
        I("s_cbranch_scc1 L_ldA")
        g.stamp(1)
        xsrd()
        if opt.R:
            assert opt.PT == 1 and opt.R == 2
            HB = opt.hb
            I(f"s_mov_b32 s63, {WS*SLOT}")
            I("s_mov_b32 s46, 0")
            g.label("L_ldW")
            I(f"s_sub_u32 s47, s46, {HB+2}")
            I("s_cmp_lt_u32 s47, 3")
            I("s_cbranch_scc1 L_w42")
            I(f"s_cmp_eq_u32 s46, {HB+1}")
            I("s_cbranch_scc1 L_w33")
            I(f"s_cmp_eq_u32 s46, {HB+5}")
            I("s_cbranch_scc1 L_w33")
            I("s_waitcnt vmcnt(24)")
            I("s_branch L_wb")
            g.label("L_w33")
            I("s_waitcnt vmcnt(33)")
            I("s_branch L_wb")
            g.label("L_w42")
            I("s_waitcnt vmcnt(42)")
            g.label("L_wb")
            I("s_barrier")
            issueW()
            I(f"s_sub_u32 s47, s46, {HB}")
            I("s_cmp_lt_u32 s47, 2")
            I("s_cbranch_scc0 L_noH")
            I("s_mov_b32 s62, s61")
            I("s_mov_b32 s61, s63")
            issueX()
            I("s_mov_b32 s63, s61")
            I("s_mov_b32 s61, s62")
            g.label("L_noH")
            I("s_add_u32 s46, s46, 1")
            I("s_cmp_lt_u32 s46, 14")
            I("s_cbranch_scc1 L_ldW")
        else:
            I(f"s_mov_b32 s46, {14 // opt.PT}")
            g.label("L_ldW")
            if opt.xa == 1:
                I("s_cmp_eq_u32 s46, 1")
                I("s_cbranch_scc1 L_ldWn")
            I(f"s_waitcnt vmcnt({8 * (4 - opt.PT)})")
            I("s_barrier")
            if opt.xa == 1: g.label("L_ldWn")
            for _ in range(opt.PT): issueW()
            I("s_sub_u32 s46, s46, 1")
            I("s_cmp_lg_u32 s46, 0")
            I("s_cbranch_scc1 L_ldW")
    if opt.R: I(f"s_mov_b32 s61, {X0SLOT*SLOT}")
    g.stamp(3)
    if opt.PT == 2:
        I("s_mov_b32 s46, 2")
        g.label("L_ldX2")
        I("s_waitcnt vmcnt(16)")
        I("s_barrier")
        issueX(); issueX()
        I("s_sub_u32 s46, s46, 1")
        I("s_cmp_lg_u32 s46, 0")
        I("s_cbranch_scc1 L_ldX2")
        I(f"s_mov_b32 s46, {NX - 4}")
    else:
        I(f"s_mov_b32 s46, {NX}")
    g.label("L_ldX")
    if opt.xa == 1:
        assert opt.PT == 1 and opt.R == 0
        I(f"s_cmp_eq_u32 s46, {NX - 1}")
        I("s_cbranch_scc1 L_ldXn")
        I(f"s_cmp_eq_u32 s46, {NX}")
        I("s_cbranch_scc0 L_ldXw")
        I("s_waitcnt vmcnt(24)")
        g.label("L_ldXw")
        I("s_waitcnt vmcnt(42)")
    elif opt.xa == 2:
        assert opt.PT == 1 and opt.R == 0
        I(f"s_cmp_gt_u32 s46, {NX - 3}")
        I("s_cbranch_scc0 L_ldXw")
        I("s_waitcnt vmcnt(24)")
        g.label("L_ldXw")
        I("s_waitcnt vmcnt(27)")
    else:
        I("s_waitcnt vmcnt(24)")
    I("s_barrier")
    if opt.xa == 1: g.label("L_ldXn")
    issueX()
    I("s_sub_u32 s46, s46, 1")
    I("s_cmp_lg_u32 s46, 0")
    I("s_cbranch_scc1 L_ldX")
    g.stamp(5)
    for n in ((42, 36, 27, 18, 9, 0) if opt.xa == 1 else (27, 18, 9, 0)):
        I(f"s_waitcnt vmcnt({n})")
        I("s_barrier")
    g.stamp(7)
    I("s_barrier")
    I("s_cmp_eq_u32 s36, 19")
    I("s_cbranch_scc0 L_ld_end")
    I("s_barrier")
    g.label("L_ld_end")
    g.stamp(8); g.stamp(14, True)
    g.dump(1, 4, opt.dbgwg)
    I("s_endpgm")

    g.label("L_storer")
    I("s_sub_u32 s37, s3, 6")
    I("v_lshrrev_b32 v4, 5, v0")
    I("v_mul_u32_u24 v4, 18432, v4")
    I("v_and_b32 v5, 31, v0")
    I("v_lshl_add_u32 v2, v5, 4, v4")
    I("v_lshlrev_b32 v24, 4, v0")
    I("s_waitcnt lgkmcnt(0)")
    if opt.wtouch:
        I("s_lshl_b32 s41, s33, 9")
        I("s_add_u32 s8, s22, s41")
        I("s_addc_u32 s9, s23, 0")
        I("s_and_b32 s9, s9, 0xffff")
        I("s_sub_u32 s10, 10616832, s41")
        I("s_mov_b32 s11, 0x20000")
        I(f"s_add_u32 s40, s34, {opt.A0}")
        I("s_mul_i32 s40, s40, 589824")
        I("s_mul_i32 s42, s37, 294912")
        I("s_add_u32 s40, s40, s42")
        for rep in range(opt.wtouch):
            I("s_mov_b32 s44, s40")
            for u in range(8):
                I(f"buffer_load_dwordx4 v[{28+4*u}:{31+4*u}], v2, s[8:11], s44 offen {opt.tflags}")
                if u < 7: I("s_add_u32 s44, s44, 36864")
            I(f"s_add_u32 s40, s40, {7*589824}")
    if opt.tlate: I("s_barrier")
    if opt.touch:
        I("s_mov_b32 s4, s20")
        I("s_and_b32 s5, s21, 0xffff")
        I("s_mov_b32 s6, 2359296")
        I("s_mov_b32 s7, 0x20000")
        I("s_mul_i32 s41, s32, 9360")
        I("s_mul_i32 s42, s37, 5120")
        I("s_add_u32 s41, s41, s42")
        I("v_add_u32 v25, 4096, v24")
        for u in range(5):
            I(f"buffer_load_dwordx4 v[{60+4*u}:{63+4*u}], {'v24' if u < 4 else 'v25'}, s[4:7], s41 offen offset:{(u%4)*1024}")
    if opt.ltouch:
        I("s_mul_i32 s42, s33, 52429")
        I("s_lshr_b32 s42, s42, 18")
        I("s_mul_i32 s42, s42, 5")
        I("s_sub_u32 s42, s33, s42")
        I("s_add_u32 s42, s42, s35")
        I("s_mul_i32 s41, s42, 18432")
        I("s_mul_i32 s42, s37, 9216")
        I("s_add_u32 s41, s41, s42")
        I("v_add_u32 v25, 4096, v24")
        I("v_add_u32 v26, 8192, v24")
        if opt.ltb == 0:
            for u in range(9):
                I(f"buffer_load_dwordx4 v[{28+4*u}:{31+4*u}], v{24 + u//4}, s[4:7], s41 offen offset:{(u%4)*1024}")
        else:
            I("s_mov_b32 s43, s41")
    I("v_lshrrev_b32 v4, 4, v0")
    I("s_lshl_b32 s38, s37, 3")
    I("v_add_u32 v4, s38, v4")
    I("v_and_b32 v5, 15, v0")
    for u in range(2):
        I(f"v_add_u32 v8, {4*u}, v4")
        I("v_xor_b32 v9, v5, v8")
        I("v_lshlrev_b32 v9, 4, v9")
        I(f"v_lshl_add_u32 v{10+u}, v8, 8, v9")
        I("v_mul_u32_u24 v8, 9216, v8")
        I(f"v_lshl_add_u32 v{12+u}, v5, 4, v8")
    I("s_mul_i32 s39, s35, 147456")
    I("s_lshl_b32 s38, s33, 8")
    I("s_add_u32 s39, s39, s38")
    I("s_add_u32 s12, s28, s39")
    I("s_addc_u32 s13, s29, 0")
    I("s_and_b32 s13, s13, 0xffff")
    I("s_mul_i32 s14, s36, 147456")
    I("s_sub_u32 s14, s14, s38")
    I("s_mov_b32 s15, 0x20000")
    nb = len([b for b in barriers(opt) if b <= 19]) + (1 if opt.late else 0)
    used = 1 if opt.tlate else 0
    if opt.ltouch and opt.ltb:
        for _ in range(opt.ltb): I("s_barrier")
        for u in range(9):
            I(f"buffer_load_dwordx4 v[{28+4*u}:{31+4*u}], v{24 + u//4}, s[4:7], s43 offen offset:{(u%4)*1024}")
            if u in (2, 5): I("s_barrier")
        used += opt.ltb + 2
    I(f"s_mov_b32 s46, {nb} - {used}")
    g.label("L_stA")
    I("s_barrier")
    I("s_sub_u32 s46, s46, 1")
    I("s_cmp_lg_u32 s46, 0")
    I("s_cbranch_scc1 L_stA")
    g.stamp(2); g.stamp(13, True)
    I(f"s_mov_b32 s44, {opt.R*147456}")
    I("s_mul_i32 s47, s36, 147456")
    I("s_mov_b32 s45, 0")
    I("s_waitcnt vmcnt(0)")
    def store_block():
        I("v_add_u32 v14, s45, v10")
        I("v_add_u32 v15, s45, v11")
        I(f"ds_read_b128 v[16:19], v14 offset:{STG_OFF}")
        I(f"ds_read_b128 v[20:23], v15 offset:{STG_OFF}")
        I("s_xor_b32 s45, s45, 4096")
        I("s_waitcnt lgkmcnt(1)")
        if not opt.nostore: I(f"buffer_store_dwordx4 v[16:19], v12, s[12:15], s44 offen {opt.store_flags}")
        I("s_waitcnt lgkmcnt(0)")
        if not opt.nostore: I(f"buffer_store_dwordx4 v[20:23], v13, s[12:15], s44 offen {opt.store_flags}")
        I("s_add_u32 s44, s44, 147456")
        I("s_cmp_eq_u32 s44, s47")
        I("s_cselect_b32 s44, 0, s44")
    if opt.late:
        I(f"s_sub_u32 s46, s36, {2 + opt.R}")
    else:
        I(f"s_sub_u32 s46, s36, {opt.R}")
    g.label("L_stB")
    I("s_barrier")
    store_block()
    I("s_sub_u32 s46, s46, 1")
    I("s_cmp_lg_u32 s46, 0")
    I("s_cbranch_scc1 L_stB")
    if opt.late:
        I("s_barrier")
        store_block()
        if not opt.dtail: store_block()
    g.stamp(3)
    if opt.dbg: I("s_waitcnt vmcnt(0)")
    g.stamp(4); g.stamp(14, True)
    g.wsdump()
    g.dump(2, 6, opt.dbgwg)
    I("s_endpgm")

    g.label("L_compute")
    if opt.prio_compute: I(f"s_setprio {opt.prio_compute}")
    WB = 112; ACC = 96; XR = 12; EP = 60; RAW = 16; LUTV = 96
    HA = 64; HX = [80, 84, 88, 92]; V_H = [10, 1]; V_HS = 7
    V_LB = 48
    V_RA = [2, 3, 4]
    V_X0 = [5, 6, 7]; V_X1 = [8, 9, 10]
    V_ST = 11
    I("v_and_b32 v12, 15, v0")
    I("v_lshrrev_b32 v13, 4, v0")
    I("s_lshl_b32 s39, s3, 7")
    I("v_lshl_add_u32 v15, v12, 3, s39")
    I("v_and_b32 v14, 1, v13")
    I("v_lshlrev_b32 v14, 7, v14")
    I("v_xor_b32 v15, v15, v14")
    I(f"v_lshl_add_u32 v{V_RA[0]}, v13, 12, v15")
    I(f"v_add_u32 v{V_RA[0]}, {RING_OFF}, v{V_RA[0]}")
    I(f"v_add_u32 v{V_RA[1]}, {3*SLOT}, v{V_RA[0]}")
    I(f"v_add_u32 v{V_RA[2]}, {6*SLOT}, v{V_RA[0]}")
    I("v_lshrrev_b32 v14, 1, v12")
    I("v_xor_b32 v14, v14, v13")
    I("v_lshlrev_b32 v14, 4, v14")
    I("v_and_b32 v15, 7, v12")
    I("v_lshl_add_u32 v14, v15, 7, v14")
    I("v_lshrrev_b32 v15, 3, v12")
    I("v_lshl_add_u32 v14, v15, 10, v14")
    X0S = 0 if opt.R else NW % NSLOT
    WS = NSLOT - opt.R
    I(f"v_add_u32 v5, {RING_OFF + X0S * SLOT}, v14")
    I("v_xor_b32 v6, 64, v5")
    I(f"v_add_u32 v8, {SLOT}, v5")
    I(f"v_add_u32 v9, {SLOT}, v6")
    if opt.R:
        I(f"v_add_u32 v{V_H[0]}, {RING_OFF + WS * SLOT}, v14")
        I(f"v_xor_b32 v{V_H[1]}, 64, v{V_H[0]}")
    I("s_lshl_b32 s39, s3, 2")
    I("v_add_u32 v14, s39, v13")
    I("v_xor_b32 v14, v14, v12")
    I("v_lshlrev_b32 v14, 4, v14")
    I(f"v_lshl_add_u32 v{V_ST}, v12, 8, v14")
    I("s_lshl_b32 s39, s3, 11")
    I("v_and_b32 v14, 31, v0")
    I(f"v_lshl_add_u32 v{V_LB}, v14, 2, s39")
    I(f"v_mov_b32 v{V_LB+1}, v{V_LB}")
    I("v_lshrrev_b32 v15, 5, v0")
    I(f"v_lshl_add_u32 v50, v15, 10, v{V_LB}")
    I("v_lshlrev_b32 v15, 4, v15")
    I("v_lshlrev_b32 v14, 2, v12")
    I("s_mov_b32 s50, 0x43000000")
    I("s_mov_b32 s51, 0x43000000")
    I("s_mov_b32 s52, 0x05040100")
    I("s_mov_b32 s53, 0x07060302")
    I("s_mov_b32 s18, 9216")
    I("s_mov_b32 s19, 0x20000")
    I("s_mov_b32 s6, 32")
    I("s_mov_b32 s7, 0x20000")
    I("s_lshl_b32 s38, s33, 8")
    I("s_lshl_b32 s39, s3, 6")
    I("s_add_u32 s38, s38, s39")
    g.stamp(8)
    I("s_waitcnt lgkmcnt(0)")
    g.stamp(9)
    I("s_mov_b32 s16, s26")
    I("s_and_b32 s17, s27, 0xffff")
    I("s_mov_b32 s4, s24")
    I("s_and_b32 s5, s25, 0xffff")
    I("buffer_load_dword v51, v14, s[16:19], s38 offen")
    I("buffer_load_dwordx4 v[52:55], v15, s[4:7], 0 offen")
    if opt.dtail:
        I("v_mul_u32_u24 v7, 9216, v12")
        I("v_lshl_add_u32 v7, v13, 4, v7")
        I("s_lshl_b32 s39, s3, 6")
        I("v_add_u32 v7, s39, v7")
        I("s_add_u32 s39, s35, s36")
        I("s_sub_u32 s39, s39, 1")
        I("s_mul_i32 s39, s39, 147456")
        I("s_lshl_b32 s38, s33, 8")
        I("s_add_u32 s39, s39, s38")
        I("s_add_u32 s12, s28, s39")
        I("s_addc_u32 s13, s29, 0")
        I("s_and_b32 s13, s13, 0xffff")
        I("s_sub_u32 s14, 147456, s38")
        I("s_mov_b32 s15, 0x20000")
    def lutbuild():
        I("s_waitcnt vmcnt(0)")
        g.stamp(10)
        I("v_lshlrev_b32 v56, 16, v51")
        I("v_and_b32 v57, 0xffff0000, v51")
        for m in range(4):
            I(f"v_lshlrev_b32 v58, 16, v{52+m}")
            I(f"v_and_b32 v59, 0xffff0000, v{52+m}")
            for b in range(2):
                I(f"v_mul_f32 v60, v{58+b}, v56")
                I(f"v_mul_f32 v61, v{58+b}, v57")
                I(f"v_cvt_pk_bf16_f32 v{62+b}, v60, v61")
                g.ds(f"ds_write_b32 v50, v{62+b} offset:{STG_OFF + (2*m+b)*128}", [-1])
    if not opt.lutlate: lutbuild()
    if opt.R:
        assert not opt.dtail
        I("v_mul_u32_u24 v14, 9216, v12")
        I("v_lshl_add_u32 v14, v13, 4, v14")
        I("s_lshl_b32 s39, s3, 6")
        I(f"v_add_u32 v{V_HS}, s39, v14")
        I("s_mul_i32 s39, s35, 147456")
        I("s_lshl_b32 s38, s33, 8")
        I("s_add_u32 s39, s39, s38")
        I("s_add_u32 s12, s28, s39")
        I("s_addc_u32 s13, s29, 0")
        I("s_and_b32 s13, s13, 0xffff")
        I("s_mul_i32 s14, s36, 147456")
        I("s_sub_u32 s14, s14, s38")
        I("s_mov_b32 s15, 0x20000")
    I("s_waitcnt lgkmcnt(0)")
    g.lgkm = []
    g.stamp(1)

    def hx_reads(st, bank):
        for r in range(opt.R):
            d = HX[bank*2 + r]
            g.ds(f"ds_read_b128 {vr(d, 4)}, v{V_H[st & 1]} offset:{(st >> 1)*2048 + r*SLOT}", R(d, 4))
    def hx_mfma(st, bank, r, c):
        d = HX[bank*2 + r]
        g.need(R(d, 4))
        acc = HA + r*8 + c*4
        src = "0" if st == 0 else vr(acc, 4)
        I(f"v_mfma_f32_16x16x32_bf16 {vr(acc,4)}, {vr(WB + (st*2+c)*4, 4)}, {vr(d,4)}, {src}")
    def slot_base(it):
        sl = it % WS
        return sl // 3, (sl % 3) * SLOT
    def raw_reads(i):
        rb = RAW + (i % 2) * 16
        k, off = slot_base(i)
        for e in range(8):
            g.ds(f"ds_read_b64 {vr(rb + 2*e, 2)}, v{V_RA[k]} offset:{off + e*512}", R(rb + 2*e, 2))
    def lut_addr(i, e):
        if opt.nolut: return
        rb = RAW + (i % 2) * 16
        a = rb + 2*e
        g.need(R(a, 2))
        if opt.addr == "pk":
            I(f"v_pk_fma_f32 {vr(a,2)}, {vr(a,2)}, s[50:51], {vr(V_LB,2)}")
        else:
            for c in range(2):
                I(f"v_lshl_add_u32 v{a+c}, v{a+c}, 7, v{V_LB}")
    def lut_read(i, e):
        if opt.nolut: return
        rb = RAW + (i % 2) * 16
        a = rb + 2*e
        for c in range(2):
            if opt.comb == "perm":
                g.ds(f"ds_read_b32 v{LUTV+2*e+c}, v{a+c} offset:{STG_OFF}", [LUTV + 2*e + c])
            else:
                d = WB + (i*2+c)*4 + e//2
                op = "ds_read_u16_d16" if e % 2 == 0 else "ds_read_u16_d16_hi"
                g.ds(f"{op} v{d}, v{a+c} offset:{STG_OFF + 2*c}", [d])
    def lut(i, e):
        lut_addr(i, e); lut_read(i, e)
    def comb(i, t):
        if opt.comb != "perm" or opt.nolut: return
        for c in range(2):
            ev = LUTV + 2*(2*t) + c; od = LUTV + 2*(2*t+1) + c
            g.need([ev, od])
            I(f"v_perm_b32 v{WB + (i*2+c)*4 + t}, v{od}, v{ev}, s{52+c}")
    P0, P1, Q0, Q1 = 5, 6, 8, 9
    def xread(base, st, ringslot):
        a = base[st & 1]
        g.ds(f"ds_read_b128 {vr(XR + ringslot*4, 4)}, v{a} offset:{(st >> 1) * 2048}", R(XR + ringslot*4, 4))
    def raw_read1(i, e):
        rb = RAW + (i % 2) * 16
        k, off = slot_base(i)
        g.ds(f"ds_read_b64 {vr(rb + 2*e, 2)}, v{V_RA[k]} offset:{off + e*512}", R(rb + 2*e, 2))
    def raw_read2(i, e):
        rb = RAW + (i % 2) * 16
        k, off = slot_base(i)
        o = off // 512 + e
        g.ds(f"ds_read2st64_b64 {vr(rb + 2*e, 4)}, v{V_RA[k]} offset0:{o} offset1:{o+1}", R(rb + 2*e, 4))
    if opt.lutwaves < 4:
        I(f"s_cmp_ge_u32 s3, {opt.lutwaves}")
        I("s_cbranch_scc0 L_p1go")
        for _ in range(19): I("s_barrier")
        I("s_branch L_p2go")
        g.label("L_p1go")
    bset = set(barriers(opt))
    I("s_barrier")
    g.stamp(2)
    raw_reads(0)
    if opt.lutlate: lutbuild()
    for i in range(1, NW + 1):
        if i % opt.PT == 0:
            if opt.PT > 1 and i < NW + 1:
                g.need(R(RAW + ((i-1) % 2) * 16, 16))
            I("s_barrier")
            if i in (6, 12, 18): g.stamp({6:4, 12:5, 18:6}[i])
        if i == 1: g.stamp(3)
        lut_addr(i-1, 0); lut_addr(i-1, 1)
        if i >= 2: comb(i-2, 2)
        if i >= 2: comb(i-2, 3)
        H0 = opt.hb + 6
        nd = H0 - 2
        if not opt.R or i < H0: hsteps = []
        elif i < H0 + nd: hsteps = [2*(i-H0), 2*(i-H0)+1]
        else: hsteps = [i-2]
        if opt.R and i == NW: hsteps = hsteps + [NW-1]
        hy = bool(hsteps)
        hm = [(st, bk, r, c) for bk, st in enumerate(hsteps) if st <= i-2 for r in range(opt.R) for c in range(2)]
        ne = 8 - opt.he0
        per = -(-len(hm) // ne)
        for e in range(8):
            if hy and e == opt.hrd:
                for bk, st in enumerate(hsteps): hx_reads(st, bk)
            if e + 2 < 8: lut_addr(i-1, e+2)
            lut_read(i-1, e)
            if e >= opt.he0 and hm: hx_mfma(*hm.pop(0))
            if i < NW: raw_read1(i, e)
            elif e < opt.D: xread((P0, P1), e, e)
            if e >= opt.he0:
                for _ in range(per - 1):
                    if hm: hx_mfma(*hm.pop(0))
            if e == 5: comb(i-1, 0)
            if e == 7: comb(i-1, 1)
        assert not hm
    comb(NW-1, 2); comb(NW-1, 3)
    for r in range(opt.R):
        for c in range(2): hx_mfma(NW-1, 1, r, c)
    if opt.R:
        I("s_nop 7")
        I("s_nop 3")
        for r in range(opt.R):
            a0 = HA + r*8
            for q in range(4):
                I(f"v_cvt_pk_bf16_f32 v{a0+q}, v{a0+q}, v{a0+4+q}")
            I(f"s_mov_b32 s44, {r*147456}")
            I(f"buffer_store_dwordx4 {vr(a0, 4)}, v{V_HS}, s[12:15], s44 offen {opt.hflags}")
    if opt.comb != "perm":
        g.need(R(WB + (NW-1)*8, 8))
    if opt.lutwaves < 4:
        g.wait_lgkm(0)
        g.label("L_p2go")
    def epi_cvt(par, r):
        if opt.nocvt: return
        a0 = ACC + par*8; a1 = a0 + 4
        I(f"v_cvt_pk_bf16_f32 v{EP+r}, v{a0+r}, v{a1+r}")
    def epi_write(par, part=None):
        if opt.nowrite: return
        if part is None:
            g.ds(f"ds_write_b128 v{V_ST}, {vr(EP,4)} offset:{STG_OFF + par*4096}", [])
        else:
            g.ds(f"ds_write_b64 v{V_ST}, {vr(EP+2*part,2)} offset:{STG_OFF + par*4096 + 8*part}", [])
    def wait_epi():
        idx = -1
        for k, d in enumerate(g.lgkm):
            if len(d) == 0: idx = k
        if idx >= 0: g.wait_lgkm(len(g.lgkm) - 1 - idx)
    assert 18 % opt.RING == 0 and NSLOT == 8 and NW % 2 == 0
    def item(par):
        cur = (P0, P1) if par == 0 else (Q0, Q1)
        nxt = (Q0, Q1) if par == 0 else (P0, P1)
        sb = 17 - opt.D
        for s in range(18):
            xr = XR + (s % opt.RING) * 4
            if opt.wait2 and s % 2 == 0 and s + 1 < 18:
                g.need(R(xr, 4) + R(XR + ((s+1) % opt.RING) * 4, 4))
            else:
                g.need(R(xr, 4))
            def mf(c):
                acc = ACC + par*8 + c*4
                src = "0" if s == 0 else vr(acc, 4)
                I(f"v_mfma_f32_16x16x32_bf16 {vr(acc,4)}, {vr(WB + (s*2+c)*4, 4)}, {vr(xr,4)}, {src}")
            mf(0)
            ns = s + opt.D
            if ns < 18: xread(cur, ns, ns % opt.RING)
            else: xread(nxt, ns - 18, ns % opt.RING)
            e0 = sb - 3
            if e0 <= s < e0 + 4: epi_cvt(1 - par, s - e0)
            mf(1)
            w0 = sb + 1
            if s == w0: epi_write(1 - par, 0)
            if s == w0 + 2: epi_write(1 - par, 1)
            if s == sb:
                wait_epi()
                I("s_barrier")
            if par == 0:
                if s == 1: I("s_add_u32 s60, s60, 2")
                if s == 2: I(f"s_cmp_ge_u32 s60, {NSLOT}")
                if s == 3: I("s_cselect_b32 s61, s57, s56")
                if s == 4: I(f"s_and_b32 s60, s60, {NSLOT-1}")
            if s == w0 + 1: I(f"v_add_u32 v{cur[0]}, s61, v{cur[0]}")
            if s == w0 + 3: I(f"v_add_u32 v{cur[1]}, s61, v{cur[1]}")
            if s == 5: I("s_sub_u32 s46, s46, 1")
            if s == 6: I("s_cmp_eq_u32 s46, 0")
    I(f"s_mov_b32 s60, {X0S}")
    I(f"s_mov_b32 s56, {2*SLOT}")
    I(f"s_mov_b32 s57, {-(NSLOT-2)*SLOT & 0xffffffff:#x}")
    I(f"s_sub_u32 s46, s36, {opt.R}")
    g.stamp(7)
    keep = len(g.lines)
    g.lgkm = []
    item(0); item(1)
    st = list(g.lgkm)
    del g.lines[keep:]
    g.lgkm = list(st)
    g.label("L_p2")
    item(0)
    st0 = list(g.lgkm)
    I("s_cbranch_scc1 L_exit0")
    item(1)
    assert g.lgkm == st, (g.lgkm, st)
    I("s_cbranch_scc0 L_p2")
    if opt.dtail:
        I("s_waitcnt lgkmcnt(0)")
        I("s_barrier")
        I("s_nop 7")
        for r in range(4): epi_cvt(1, r)
        I(f"buffer_store_dwordx4 {vr(EP,4)}, v7, s[12:15], 0 offen {opt.hflags}")
    else:
        I("s_nop 7")
        for r in range(4): epi_cvt(1, r)
        epi_write(1)
        I("s_waitcnt lgkmcnt(0)")
        I("s_barrier")
    g.stamp(11); g.stamp(14, True)
    g.dump(0, 0, opt.dbgwg)
    I("s_endpgm")
    g.label("L_exit0")
    g.lgkm = st0
    if opt.dtail:
        I("s_waitcnt lgkmcnt(0)")
        I("s_barrier")
        I("s_nop 7")
        for r in range(4): epi_cvt(0, r)
        I(f"buffer_store_dwordx4 {vr(EP,4)}, v7, s[12:15], 0 offen {opt.hflags}")
    else:
        I("s_nop 7")
        for r in range(4): epi_cvt(0, r)
        epi_write(0)
        I("s_waitcnt lgkmcnt(0)")
        I("s_barrier")
    g.stamp(11); g.stamp(14, True)
    g.dump(0, 0, opt.dbgwg)
    g.label("L_exit")
    I("s_endpgm")
    g.raw('.section .rodata,"a"')
    g.raw(".p2align 6")
    g.raw(f".amdhsa_kernel {NAME}_kernel")
    g.raw("  .amdhsa_next_free_vgpr 256")
    g.raw(f"  .amdhsa_next_free_sgpr {96 if opt.dbg else 64}")
    g.raw("  .amdhsa_accum_offset 256")
    g.raw("  .amdhsa_group_segment_fixed_size 0")
    g.raw("  .amdhsa_kernarg_size 56")
    g.raw("  .amdhsa_user_sgpr_count 2")
    g.raw("  .amdhsa_user_sgpr_kernarg_segment_ptr 1")
    g.raw("  .amdhsa_system_sgpr_workgroup_id_x 1")
    g.raw("  .amdhsa_float_denorm_mode_32 3")
    g.raw(".end_amdhsa_kernel")
    return g.text()

if __name__ == "__main__":
    opt = Opt()
    for a in sys.argv[2:]:
        k, v = a.split("=")
        cur = getattr(opt, k)
        setattr(opt, k, type(cur)(v) if not isinstance(cur, bool) else v == "1")
    open(sys.argv[1], "w").write(build(opt))
```
